```python
import torch

def _softmax(x, axis=-1):
    return torch.softmax(x, dim=axis)
def _gelu(x):
    return torch.nn.functional.gelu(x, approximate="tanh")
def _silu(x):
    return torch.nn.functional.silu(x)
def _sigmoid(x):
    return torch.sigmoid(x)
def _layernorm(x, axis=-1, eps=1e-5):
    m = x.mean(dim=axis, keepdim=True)
    v = x.var(dim=axis, keepdim=True, unbiased=False)
    return (x - m) / torch.sqrt(v + eps)
def _scatter_add(tgt, idx, src, axis=0):
    return tgt.clone().index_add_(axis, idx, src)
def _segment_sum(src, seg, n):
    out = torch.zeros((n,) + src.shape[1:], dtype=src.dtype)
    return out.index_add_(0, seg, src)
def _pad(x, pw):
    flat = tuple(v for pair in reversed(pw) for v in pair)
    return torch.nn.functional.pad(x, flat)

kernel_name = 'sequential_preLN__sliding_block__mixer_token_mlp__prompt'

def setup_inputs():

    _w = (lambda a: (lambda t: t.to(torch.bfloat16) if t.is_floating_point() else t)(torch.as_tensor(a)))
    def _A_setup():
        B, S, D = 1, 2048, 512
        return {
            "x": _w((lambda *s: torch.randn(*s, dtype=torch.bfloat16) * 0.05)(B, S, D)),
            "wqkv": _w((lambda *s: torch.randn(*s, dtype=torch.bfloat16) * 0.05)(D, 3 * D)),
            "wo": _w((lambda *s: torch.randn(*s, dtype=torch.bfloat16) * 0.05)(D, D)),
        }
    _A_in = _A_setup()

    def _B_setup():
        B, S, D, F = 1, 2048, 512, 1376
        return {
            "x": _w((lambda *s: torch.randn(*s, dtype=torch.bfloat16) * 0.05)(B, S, D)),
            "w1": _w((lambda *s: torch.randn(*s, dtype=torch.bfloat16) * 0.8)(S, F) * (S ** -0.5)),
            "b1": _w((lambda *s: torch.randn(*s, dtype=torch.bfloat16) * 0.8)(F) * 0.02),
            "w2": _w((lambda *s: torch.randn(*s, dtype=torch.bfloat16) * 0.8)(F, S) * (F ** -0.5)),
            "b2": _w((lambda *s: torch.randn(*s, dtype=torch.bfloat16) * 0.8)(S) * 0.02),
        }
    _B_in = _B_setup()

    return {
        "A_x": _A_in["x"],
        "A_wqkv": _A_in["wqkv"],
        "A_wo": _A_in["wo"],
        "B_x": _B_in["x"],
        "B_w1": _B_in["w1"],
        "B_b1": _B_in["b1"],
        "B_w2": _B_in["w2"],
        "B_b2": _B_in["b2"],
    }

def reference(A_x, A_wqkv, A_wo, B_x, B_w1, B_b1, B_w2, B_b2):
    def _A_ref(x, wqkv, wo):
        B, S, D = x.shape
        H = 32; Dh = D // H; W = 256
        qkv = (lambda x, *d: x.permute(*d))((x @ wqkv).reshape(B, S, 3, H, Dh), 2, 0, 3, 1, 4)
        q, k, v = qkv[0], qkv[1], qkv[2]
        scores = torch.einsum("bhqd,bhkd->bhqk", q, k) * (Dh ** -0.5)
        idx = torch.arange(S)
        mask = (idx[:, None] - idx[None, :] >= 0) & (idx[:, None] - idx[None, :] < W)
        scores = torch.where(mask[None, None], scores, -1e9)
        p = _softmax(scores, axis=-1)
        o = torch.einsum("bhqk,bhkd->bhqd", p, v)
        return (lambda x, *d: x.permute(*d))(o, 0, 2, 1, 3).reshape(B, S, D) @ wo

    def _B_ref(x, w1, b1, w2, b2):
        B, S, D = x.shape
        h = _layernorm(x, axis=-1)
        u = torch.einsum("bsd,sf->bdf", h, w1) + b1
        u = _gelu(u)
        y = torch.einsum("bdf,fs->bds", u, w2) + b2
        return (lambda x, *d: x.permute(*d))(y, 0, 2, 1)

    x = A_x
    h = x + _A_ref(_layernorm(x, axis=-1), A_wqkv, A_wo)
    h2 = h + _B_ref(_layernorm(h, axis=-1), B_w1, B_b1, B_w2, B_b2)
    return h2
```

```python
import re

REG_RE = re.compile(r'^(-|abs\()?([vas])(\d+|\[(\d+):(\d+)\])\)?$')

def parse_reg(tok):
    tok = tok.strip()
    if tok == 'vcc': return ('s', 106, 107)
    if tok == 'vcc_lo': return ('s', 106, 106)
    if tok == 'vcc_hi': return ('s', 107, 107)
    if tok == 'exec': return ('s', 126, 127)
    if tok == 'exec_lo': return ('s', 126, 126)
    if tok == 'exec_hi': return ('s', 127, 127)
    if tok == 'm0': return ('s', 124, 124)
    t = tok
    if t.startswith('-'): t = t[1:]
    if t.startswith('abs(') and t.endswith(')'): t = t[4:-1]
    if t.startswith('|') and t.endswith('|'): t = t[1:-1]
    m = re.match(r'^([vas])(\d+)$', t)
    if m: return (m.group(1), int(m.group(2)), int(m.group(2)))
    m = re.match(r'^([vas])\[(\d+):(\d+)\]$', t)
    if m: return (m.group(1), int(m.group(2)), int(m.group(3)))
    return None

def regset(r):
    if r is None: return set()
    return {(r[0], i) for i in range(r[1], r[2] + 1)}

TRANS = ('v_exp_f32', 'v_log_f32', 'v_rcp_f32', 'v_rsq_f32', 'v_sqrt_f32', 'v_sin_f32', 'v_cos_f32', 'v_rcp_iflag_f32')

class Ins:
    def __init__(self, text):
        self.text = text
        body = text.split(';')[0].strip()
        parts = body.split(None, 1)
        self.op = parts[0]
        rest = parts[1] if len(parts) > 1 else ''
        ops = []; depth = 0; cur = ''
        for ch in rest:
            if ch in '[(': depth += 1
            if ch in '])': depth -= 1
            if ch == ',' and depth == 0: ops.append(cur.strip()); cur = ''
            else: cur += ch
        if cur.strip(): ops.append(cur.strip())
        self.mods = ''
        if ops:
            l = ops[-1].split(None, 1)
            ops[-1] = l[0]
            if len(l) > 1: self.mods = l[1]
        self.ops = ops
        op = self.op
        self.is_mfma = op.startswith('v_mfma')
        self.is_valu = op.startswith('v_') and not self.is_mfma
        self.is_ds = op.startswith('ds_')
        self.is_vmem = op.startswith(('buffer_', 'global_', 'flat_'))
        self.is_salu = op.startswith('s_')
        self.is_trans = any(op.startswith(t) for t in TRANS)
        self.is_dot = op.startswith('v_dot')
        self.is_dpp = ('_dpp' in op) or ('quad_perm' in self.mods) or ('row_' in self.mods)
        self.is_perml = op.startswith('v_permlane')
        self.is_lds_dma = self.is_vmem and (' lds' in (' ' + self.mods) or 'load_lds' in op)
        self.defs = set(); self.uses = set()
        self.srcc = set(); self.srcab = set(); self.store_data = set()
        R = [parse_reg(o) for o in ops]
        if self.is_mfma:
            self.defs = regset(R[0]); self.srcab = regset(R[1]) | regset(R[2]); self.srcc = regset(R[3])
            self.uses = self.srcab | self.srcc
            self.passes = 8 if '32x32x16' in op else 4
        elif self.is_valu:
            if op.startswith('v_cmp'):
                self.defs = regset(R[0]); self.uses = set().union(*[regset(r) for r in R[1:]])
                if op.startswith('v_cmpx'): self.defs |= regset(('s', 126, 127))
            elif op.startswith(('v_add_co', 'v_sub_co', 'v_subrev_co', 'v_addc_co', 'v_subb_co', 'v_div_scale', 'v_mad_u64')):
                self.defs = regset(R[0]) | regset(R[1]); self.uses = set().union(*[regset(r) for r in R[2:]])
            elif (self.is_perml and 'swap' in op) or op.startswith('v_swap'):
                self.defs = regset(R[0]) | regset(R[1]); self.uses = set(self.defs)
            elif op == 'v_nop':
                pass
            else:
                self.defs = regset(R[0]); self.uses = set().union(set(), *[regset(r) for r in R[1:]])
                if op.startswith(('v_fmac', 'v_dot2c', 'v_pk_fmac', 'v_writelane')) or self.is_dpp or 'sdwa' in op:
                    self.uses |= self.defs
        elif self.is_ds:
            if op.startswith(('ds_read', 'ds_bpermute', 'ds_permute', 'ds_swizzle')) or '_rtn' in op:
                self.defs = regset(R[0]); self.uses = set().union(set(), *[regset(r) for r in R[1:]])
            else:
                self.uses = set().union(set(), *[regset(r) for r in R])
        elif self.is_vmem:
            if self.is_lds_dma or op.startswith(('buffer_wbl2', 'buffer_inv')):
                self.uses = set().union(set(), *[regset(r) for r in R])
            elif '_load' in op:
                self.defs = regset(R[0]); self.uses = set().union(set(), *[regset(r) for r in R[1:]])
            elif '_atomic' in op and 'sc0' in self.mods:
                self.uses = set().union(set(), *[regset(r) for r in R])
                self.defs = regset(R[0])
            else:
                self.uses = set().union(set(), *[regset(r) for r in R])
                if op.startswith('buffer_store'): d = R[0]
                elif op.startswith('global_store'): d = R[1]
                else: d = None
                if d is not None and d[2] - d[1] >= 2: self.store_data = regset(d)
        elif self.is_salu:
            if op.startswith(('s_cmp', 's_cbranch', 's_branch', 's_waitcnt', 's_nop', 's_barrier', 's_endpgm', 's_setprio', 's_sleep', 's_bitcmp')):
                self.uses = set().union(set(), *[regset(r) for r in R])
            else:
                if R: self.defs = regset(R[0])
                self.uses = set().union(set(), *[regset(r) for r in R[1:]])
                if 'saveexec' in op: self.defs |= regset(('s', 126, 127))
    def states(self):
        if self.op == 's_nop': return int(self.ops[0], 0) + 1
        return 1

def vonly(s): return {r for r in s if r[0] in 'va'}
def sonly(s): return {r for r in s if r[0] == 's'}

def required(p, c):
    need = 0
    if p.is_valu:
        pv = vonly(p.defs); ps = sonly(p.defs)
        if c.is_mfma and pv & c.uses: need = max(need, 3 if p.is_dot else 2)
        if c.is_valu:
            if p.is_trans and not c.is_trans and pv & c.uses: need = max(need, 1)
            if p.is_dot and (pv & (c.uses | c.defs)):
                same = (c.op == p.op)
                if same and c.op.startswith('v_dot2c'):
                    ab = set().union(*[regset(parse_reg(o)) for o in c.ops[1:3]])
                    if pv & ab: need = max(need, 3)
                elif same:
                    ab = set().union(*[regset(parse_reg(o)) for o in c.ops[1:3]])
                    if pv & ab: need = max(need, 3)
                else: need = max(need, 3)
            if c.is_dpp and pv & c.uses: need = max(need, 2)
            if c.is_perml and pv & c.uses: need = max(need, 2)
            if c.op.startswith(('v_readlane', 'v_readfirstlane')) and pv & c.uses: need = max(need, 1)
            if ps & c.uses:
                need = max(need, 4 if c.op.startswith(('v_readlane', 'v_writelane', 'v_div_fmas')) else 2)
            if ('s', 126) in ps:
                if c.is_dpp: need = max(need, 5)
                if c.is_perml or c.op.startswith(('v_readlane', 'v_readfirstlane', 'v_writelane')): need = max(need, 4)
            if 'sdwa' in p.op or 'op_sel' in p.mods:
                if not p.is_dot and pv & (c.uses | c.defs): need = max(need, 1)
        if p.is_dot and (c.is_vmem or c.is_ds) and pv & c.uses: need = max(need, 3)
        if c.is_mfma and ('s', 126) in ps: need = max(need, 4)
        if c.is_vmem and ps & c.uses: need = max(need, 5)
        if c.is_salu and ps & c.uses: need = max(need, 1)
    if p.is_mfma:
        tbl_ab = {4: 8, 8: 12}[p.passes]
        tbl_ov = {4: 6, 8: 10}[p.passes]
        if c.is_mfma:
            if p.defs & c.srcab: need = max(need, tbl_ab)
            if p.defs & c.srcc:
                if not (p.defs == c.srcc and p.passes == c.passes): need = max(need, tbl_ov)
            elif p.defs & c.defs:
                need = max(need, tbl_ov)
        elif c.is_valu or c.is_vmem or c.is_ds:
            if p.defs & (c.uses | c.defs): need = max(need, tbl_ab)
        if c.is_valu and p.srcc & c.defs: need = max(need, {4: 3, 8: 7}[p.passes])
    if p.is_vmem and p.store_data:
        if p.store_data & c.defs: need = max(need, 2 if c.is_valu or c.is_mfma else 1)
    if p.is_salu and ('s', 124) in p.defs:
        if c.is_lds_dma or 'addtid' in c.op or c.op.startswith(('s_movrel', 's_sendmsg')): need = max(need, 1)
    return need

class Asm:
    def __init__(self):
        self.lines = []
        self.nlabel = 0
    def __call__(self, text):
        for ln in text.split('\n'):
            s = ln.strip()
            if not s: continue
            if s.startswith((';', '.')) or s.endswith(':'):
                self.lines.append(('t', s))
            else:
                self.lines.append(('i', Ins(s)))
    def raw(self, text): self.lines.append(('t', text))
    def label(self, base='L'):
        self.nlabel += 1
        return f'{base}_{self.nlabel}'
    def finish(self):
        out = []
        hist = []
        MAXD = 24
        labels = {}
        def need_for(c, hist):
            need = 0; dist = 0
            for p in reversed(hist):
                r = required(p, c)
                if r - dist > need: need = r - dist
                dist += p.states()
                if dist >= MAXD: break
            return need
        for kind, x in self.lines:
            if kind == 't':
                out.append(('t', x))
                if x.endswith(':'): labels[x[:-1]] = len(out)
                if x.startswith('.amdhsa') or x.startswith('.section') or x.startswith('.p2align 8'): hist = []
                continue
            n = need_for(x, hist)
            while n > 0:
                k = min(n, 16)
                nop = Ins(f's_nop {k-1}')
                out.append(('i', nop)); hist.append(nop); n -= k
            out.append(('i', x)); hist.append(x)
            if x.op in ('s_endpgm', 's_branch'): hist_after = []
            else: hist_after = None
            if hist_after is not None:
                x._hist = list(hist[-MAXD:]); hist = []
            elif x.op.startswith('s_cbranch'):
                x._hist = list(hist[-MAXD:])
            if len(hist) > 64: hist = hist[-32:]
        for idx, (kind, x) in enumerate(out):
            if kind == 'i' and (x.op.startswith('s_cbranch') or x.op == 's_branch'):
                tgt = x.ops[0]
                if tgt not in labels: raise Exception('unknown label ' + tgt)
                h = list(x._hist); j = labels[tgt]; d = 0
                while j < len(out) and d < MAXD:
                    k2, y = out[j]; j += 1
                    if k2 == 't': continue
                    n = need_for(y, h)
                    if n > 0:
                        raise Exception(f'hazard across branch to {tgt}: "{y.text}" needs {n} more wait states')
                    h.append(y); d += y.states()
                    if y.op in ('s_endpgm', 's_branch'): break
        return '\n'.join((('    ' + x.text) if k == 'i' else x) for k, x in out) + '\n'
```

```python
import sys, struct, math
from asmlib import Asm

NAME = 'sequential_preLN__sliding_block__mixer_token_mlp__prompt'
MB = 1 << 20
WS_QF, WS_KF, WS_VF, WS_OF, WS_HF, WS_UF = 0, 2*MB, 4*MB, 6*MB, 8*MB, 10*MB
WS_ST = 11*MB + 512*1024
WS_W1P = 12*MB
UF_BYTES = 86*16*1024
W1P_BYTES = 64*86*1024

def f32(x): return struct.unpack('<I', struct.pack('<f', x))[0]
def hx(x): return '0x%08x' % (x & 0xffffffff)
LOG2E = math.log2(math.e)

def vr(b, n=1): return f'v{b}' if n == 1 else f'v[{b}:{b+n-1}]'
def ar(b, n=1): return f'a{b}' if n == 1 else f'a[{b}:{b+n-1}]'
def sr(b, n=1): return f's{b}' if n == 1 else f's[{b}:{b+n-1}]'

def srd(a, d, ptr, nbytes, off=0):
    if off:
        a(f's_add_u32 s{d}, s{ptr}, {hx(off)}')
        a(f's_addc_u32 s{d+1}, s{ptr+1}, 0')
    else:
        a(f's_mov_b32 s{d}, s{ptr}')
        a(f's_mov_b32 s{d+1}, s{ptr+1}')
    a(f's_mov_b32 s{d+2}, {hx(nbytes)}')
    a(f's_mov_b32 s{d+3}, 0x00020000')

def kernel_begin(a, name):
    a.raw('.text')
    a.raw(f'.globl {name}')
    a.raw('.p2align 8')
    a.raw(f'.type {name},@function')
    a.raw(f'{name}:')

def kernel_desc(name, nvgpr, accum, nsgpr=96):
    return f'''.section .rodata,"a"
.p2align 6
.amdhsa_kernel {name}
  .amdhsa_next_free_vgpr {nvgpr}
  .amdhsa_next_free_sgpr {nsgpr}
  .amdhsa_accum_offset {accum}
  .amdhsa_group_segment_fixed_size 0
  .amdhsa_kernarg_size 88
  .amdhsa_user_sgpr_count 2
  .amdhsa_user_sgpr_kernarg_segment_ptr 1
  .amdhsa_system_sgpr_workgroup_id_x 1
  .amdhsa_float_denorm_mode_32 3
.end_amdhsa_kernel
'''

def decode_rb_hg(a, s_rb, s_hg, t0, t1):
    a(f's_and_b32 s{t0}, s2, 7')
    a(f's_lshr_b32 s{t1}, s2, 3')
    a(f's_lshr_b32 s{s_rb}, s{t0}, 1')
    a(f's_lshl_b32 s{s_rb}, s{s_rb}, 3')
    a(f's_and_b32 s{s_hg}, s{t0}, 1')
    a(f's_lshl_b32 s{s_hg}, s{s_hg}, 2')
    a(f's_lshr_b32 s{t0}, s{t1}, 2')
    a(f's_add_u32 s{s_rb}, s{s_rb}, s{t0}')
    a(f's_and_b32 s{t1}, s{t1}, 3')
    a(f's_add_u32 s{s_hg}, s{s_hg}, s{t1}')

A_XROW = 1040
A_WBASE = 64 * A_XROW
A_NSLOT = 7
A_SLOT = 12288
A_LDS = A_WBASE + A_NSLOT * A_SLOT

def gen_A(a):
    name = 'ka_kernel'
    kernel_begin(a, name)
    Lend = 'ka_end'
    a('s_cmp_ge_u32 s2, 256')
    a(f's_cbranch_scc1 {Lend}')
    a('s_load_dwordx4 s[4:7], s[0:1], 0')
    a('s_load_dwordx2 s[8:9], s[0:1], 80')
    S_RB, S_HG, S_W = 28, 29, 30
    decode_rb_hg(a, S_RB, S_HG, 31, 32)
    a('v_lshrrev_b32 v1, 6, v0')
    a(f'v_readfirstlane_b32 s{S_W}, v1')
    a('v_lshrrev_b32 v2, 3, v0')
    a('v_and_b32 v3, 7, v0')
    a('v_lshlrev_b32 v4, 10, v2')
    a('v_lshl_add_u32 v4, v3, 4, v4')
    a(f's_lshl_b32 s33, s{S_RB}, 16')
    a(f'v_mul_u32_u24 v5, {A_XROW}, v2')
    a('v_lshl_add_u32 v5, v3, 4, v5')
    a('v_and_b32 v6, 31, v2')
    a('v_mul_u32_u24 v7, 3072, v6')
    a('v_lshlrev_b32 v8, 1, v2')
    a('v_and_b32 v8, 4, v8')
    a('v_xor_b32 v8, v8, v3')
    a('v_lshl_add_u32 v7, v8, 4, v7')
    a(f's_lshl_b32 s34, s{S_HG}, 7')
    a('v_add_u32 v7, s34, v7')
    a('s_waitcnt lgkmcnt(0)')
    srd(a, 12, 4, 2*MB)
    srd(a, 16, 6, 512*1536*2)
    srd(a, 20, 8, 12*MB)
    X = 16
    for i in range(8):
        a(f'buffer_load_dwordx4 {vr(X+4*i,4)}, v4, s[12:15], s33 offen offset:{128*i}')
    Lnodma = 'ka_nodma'
    a(f's_cmp_lt_u32 s{S_W}, 4')
    a(f's_cbranch_scc1 {Lnodma}')
    a(f's_sub_u32 s35, s{S_W}, 4')
    a('s_mul_i32 s35, s35, 3072')
    a(f's_add_u32 s35, s35, {A_WBASE}')
    def dma_chunk(c):
        slot = c % A_NSLOT
        a(f's_add_u32 m0, s35, {slot*A_SLOT}')
        a(f's_mov_b32 s36, {c*32*3072}')
        for p in range(3):
            a(f'buffer_load_dwordx4 v7, s[16:19], s36 offen offset:{1024*p} lds')
    for c in range(A_NSLOT):
        dma_chunk(c)
    a(f's_waitcnt vmcnt({3*A_NSLOT})')
    a(f's_branch ka_ln')
    a(f'{Lnodma}:')
    a('s_waitcnt vmcnt(0)')
    a('ka_ln:')
    a('s_mov_b32 s37, 0x3f803f80')
    a('v_mov_b32 v10, 0'); a('v_mov_b32 v11, 0'); a('v_mov_b32 v12, 0'); a('v_mov_b32 v13, 0')
    for i in range(0, 32, 2):
        a(f'v_dot2c_f32_bf16 v10, s37, v{X+i}')
        a(f'v_dot2c_f32_bf16 v12, v{X+i}, v{X+i}')
        a(f'v_dot2c_f32_bf16 v11, s37, v{X+i+1}')
        a(f'v_dot2c_f32_bf16 v13, v{X+i+1}, v{X+i+1}')
    a('v_add_f32 v10, v10, v11')
    a('v_add_f32 v12, v12, v13')
    for m in ('quad_perm:[1,0,3,2]', 'quad_perm:[2,3,0,1]', 'row_half_mirror'):
        a(f'v_add_f32_dpp v10, v10, v10 {m} row_mask:0xf bank_mask:0xf')
        a(f'v_add_f32_dpp v12, v12, v12 {m} row_mask:0xf bank_mask:0xf')
    a(f'v_mul_f32 v10, {hx(f32(1/512))}, v10')
    a(f'v_mul_f32 v12, {hx(f32(1/512))}, v12')
    a('v_fma_f32 v12, -v10, v10, v12')
    a('v_max_f32 v12, 0, v12')
    a(f'v_add_f32 v12, {hx(f32(1e-5))}, v12')
    a('v_rsq_f32 v12, v12')
    a('v_mul_f32 v10, v10, v12')
    a('s_mov_b32 s38, 0xffff0000')
    for i in range(8):
        for j in range(4):
            x = X + 4*i + j
            t0, t1 = (48, 49) if j % 2 == 0 else (50, 51)
            a(f'v_lshlrev_b32 v{t0}, 16, v{x}')
            a(f'v_and_b32 v{t1}, s38, v{x}')
            a(f'v_fma_f32 v{t0}, v{t0}, v12, -v10')
            a(f'v_fma_f32 v{t1}, v{t1}, v12, -v10')
            a(f'v_cvt_pk_bf16_f32 v{x}, v{t0}, v{t1}')
        a(f'ds_write_b128 v5, {vr(X+4*i,4)} offset:{128*i}')
    a(f's_cmp_lt_u32 s{S_W}, 4')
    a(f's_cbranch_scc1 ka_compute')
    a(f's_cmp_lg_u32 s{S_W}, 4')
    a('s_cbranch_scc1 ka_nozero')
    a('v_and_b32 v8, 63, v0')
    a('v_lshlrev_b32 v8, 2, v8')
    a('v_mov_b32 v9, 0')
    a('s_lshl_b32 s39, s2, 6')
    a(f's_add_u32 s39, s39, {WS_ST}')
    a('s_mov_b64 exec, 0xffff')
    a('buffer_store_dword v9, v8, s[20:23], s39 offen')
    a('s_mov_b64 exec, -1')
    a('s_waitcnt vmcnt(0)')
    a('ka_nozero:')
    a('s_waitcnt lgkmcnt(0)')
    issued = A_NSLOT
    for i in range(16):
        a(f's_waitcnt vmcnt({3*(issued-1-i)})')
        a('s_barrier')
        if i >= 1 and issued < 16:
            dma_chunk(issued); issued += 1
    a('s_endpgm')
    a('ka_compute:')
    a('v_and_b32 v1, 63, v0')
    a('v_and_b32 v2, 31, v0')
    a('v_bfe_u32 v3, v0, 5, 1')
    a(f's_and_b32 s40, s{S_W}, 1')
    a(f's_lshr_b32 s41, s{S_W}, 1')
    a('s_lshl_b32 s42, s40, 5')
    a('v_add_u32 v4, s42, v2')
    a(f'v_mul_u32_u24 v4, {A_XROW}, v4')
    a('v_lshl_add_u32 v4, v3, 4, v4')
    a('v_bfe_u32 v5, v0, 2, 2')
    a('v_lshrrev_b32 v6, 1, v5')
    a('v_xor_b32 v6, s41, v6')
    a('v_lshlrev_b32 v6, 6, v6')
    a('v_lshl_add_u32 v6, v5, 7, v6')
    a('v_bfe_u32 v7, v0, 4, 1')
    a('v_lshl_add_u32 v6, v7, 5, v6')
    a('v_and_b32 v7, 3, v0')
    a('v_lshl_add_u32 v6, v7, 3, v6')
    a('v_mul_u32_u24 v7, 3072, v3')
    a('v_add_u32 v6, v6, v7')
    a(f'v_add_u32 v6, {A_WBASE}, v6')
    a(f'v_add_u32 v7, {4*A_SLOT}, v6')
    ACC = 64
    SET = [112, 144]
    def reads(c):
        base = SET[c % 2]; slot = c % A_NSLOT
        areg, soff = ('v6', slot*A_SLOT) if slot < 4 else ('v7', (slot-4)*A_SLOT)
        lst = []
        for t in range(2):
            lst.append(f'ds_read_b128 {vr(base+16*t,4)}, v4 offset:{(c*32+16*t)*2}')
            for p in range(3):
                for j in range(2):
                    lst.append(f'ds_read_b64_tr_b16 {vr(base+16*t+4+4*p+2*j,2)}, {areg} offset:{soff+t*6144+p*1024+j*512}')
        return lst
    def mfmas(c):
        base = SET[c % 2]; lst = []
        for t in range(2):
            xf = vr(base+16*t, 4)
            for p in range(3):
                wf = vr(base+16*t+4+4*p, 4); acc = vr(ACC+16*p, 16)
                cin = '0' if (c == 0 and t == 0) else acc
                if p < 2: lst.append(f'v_mfma_f32_32x32x16_bf16 {acc}, {wf}, {xf}, {cin}')
                else:     lst.append(f'v_mfma_f32_32x32x16_bf16 {acc}, {xf}, {wf}, {cin}')
        return lst
    for i in range(16):
        a('s_waitcnt lgkmcnt(0)')
        a('s_barrier')
        r = reads(i)
        m = mfmas(i-1) if i > 0 else []
        ri = 0
        for k, mm in enumerate(m):
            a(mm)
            n = 3 if k < 2 else 2
            for _ in range(n):
                if ri < len(r): a(r[ri]); ri += 1
        while ri < len(r): a(r[ri]); ri += 1
    a('s_waitcnt lgkmcnt(0)')
    for mm in mfmas(15): a(mm)
    a(f's_lshl_b32 s43, s{S_RB}, 1')
    a('s_add_u32 s43, s43, s40')
    a(f's_lshl_b32 s44, s{S_HG}, 2')
    a('s_lshl_b32 s45, s41, 1')
    a('s_add_u32 s44, s44, s45')
    a('s_lshl_b32 s44, s44, 16')
    a('s_lshl_b32 s43, s43, 10')
    a('s_add_u32 s44, s44, s43')
    a('s_add_u32 s45, s44, 0x10000')
    a(f's_add_u32 s46, s44, {WS_KF}')
    a(f's_add_u32 s47, s45, {WS_KF}')
    a(f's_add_u32 s48, s44, {WS_VF}')
    a('v_lshlrev_b32 v8, 4, v1')
    a('v_bfe_u32 v9, v0, 4, 1')
    a('v_lshlrev_b32 v9, 16, v9')
    a('v_lshl_add_u32 v9, v3, 8, v9')
    a('v_and_b32 v10, 15, v0')
    a('v_lshl_add_u32 v9, v10, 4, v9')
    a(f's_mov_b32 s49, {hx(f32(0.25*LOG2E))}')
    for r in range(16):
        a(f'v_mul_f32 v{ACC+r}, s49, v{ACC+r}')
    P = 16
    for p in range(3):
        for r in range(8):
            a(f'v_cvt_pk_bf16_f32 v{P+8*p+r}, v{ACC+16*p+2*r}, v{ACC+16*p+2*r+1}')
        if p == 0:
            a(f'buffer_store_dwordx4 {vr(P,4)}, v8, s[20:23], s44 offen')
            a(f'buffer_store_dwordx4 {vr(P+4,4)}, v8, s[20:23], s45 offen')
        elif p == 1:
            a(f'buffer_store_dwordx4 {vr(P+8,4)}, v8, s[20:23], s46 offen')
            a(f'buffer_store_dwordx4 {vr(P+12,4)}, v8, s[20:23], s47 offen')
        else:
            a(f'buffer_store_dwordx4 {vr(P+16,4)}, v9, s[20:23], s48 offen')
            a(f'buffer_store_dwordx4 {vr(P+20,4)}, v9, s[20:23], s48 offen offset:512')
    a(f'{Lend}:')
    a('s_endpgm')
    return name, kernel_desc(name, 176, 176), f'; @launch kernel={name} grid=(256,1,1) block=(512,1,1) lds={A_LDS}'

def gen_B(a):
    name = 'kb_kernel'
    kernel_begin(a, name)
    a('s_cmp_ge_u32 s2, 256')
    a('s_cbranch_scc1 kb_end')
    a('s_load_dwordx2 s[8:9], s[0:1], 80')
    a('s_load_dwordx2 s[10:11], s[0:1], 32')
    S_RB, S_HG, S_W = 28, 29, 30
    decode_rb_hg(a, S_RB, S_HG, 31, 32)
    a('v_lshrrev_b32 v1, 6, v0')
    a(f'v_readfirstlane_b32 s{S_W}, v1')
    a('v_and_b32 v1, 63, v0')
    a('v_lshlrev_b32 v2, 4, v1')
    a('v_bfe_u32 v3, v0, 5, 1')
    a('v_and_b32 v4, 15, v0')
    a('v_lshlrev_b32 v4, 4, v4')
    a('v_lshl_add_u32 v4, v3, 8, v4')
    a(f's_and_b32 s31, s{S_W}, 1')
    a(f's_lshr_b32 s32, s{S_W}, 1')
    a(f's_lshl_b32 s33, s{S_RB}, 1')
    a('s_add_u32 s33, s33, s31')
    a(f's_lshl_b32 s34, s{S_HG}, 2')
    a('s_add_u32 s34, s34, s32')
    a('s_lshl_b32 s35, s34, 16')
    a('s_lshl_b32 s36, s33, 10')
    a('s_add_u32 s35, s35, s36')
    for i in range(3):
        a(f's_add_u32 s{40+i}, s35, {WS_KF - 8192 + 4096*i}')
        a(f's_add_u32 s{44+i}, s35, {WS_VF - 8192 + 4096*i}')
    Q, K, V, MF, MD, S0, S1, NM, P0, O, PK = 12, 16, 52, 124, 140, 156, 172, 188, 204, 220, 236
    a('s_mov_b32 s37, 0x3f803f80')
    a('s_waitcnt lgkmcnt(0)')
    srd(a, 20, 8, 8*MB)
    a(f'buffer_load_dwordx4 {vr(Q,4)}, v2, s[20:23], s35 offen')
    for j in range(8, -1, -1):
        a(f'buffer_load_dwordx4 {vr(K+4*j,4)}, v2, s[20:23], s{40+j//4} offen offset:{1024*(j%4)}')
    for i in range(72):
        a(f'v_mov_b32 v{V+i}, s37')
    a('s_mov_b32 exec_lo, 0xffff')
    a('s_mov_b32 exec_hi, 0xffff')
    for j in range(8, -1, -1):
        for g in range(2):
            a(f'buffer_load_dwordx4 {vr(V+8*j+4*g,4)}, v4, s[20:23], s{44+j//4} offen offset:{1024*(j%4)+512*g}')
    a('s_mov_b64 exec, -1')
    srd(a, 24, 10, 2048*1376*2)
    srd(a, 48, 8, W1P_BYTES, WS_W1P)
    a('v_lshlrev_b32 v5, 3, v0')
    a('s_mul_i32 s38, s2, 22016')
    a('v_cmp_gt_u32 vcc, 344, v0')
    a('v_mov_b32 v6, 0x7fffffff')
    a('v_cndmask_b32 v5, v6, v5, vcc')
    for r in range(8):
        if r: a(f's_add_u32 s38, s38, 2752')
        a(f'buffer_load_dwordx2 {vr(PK+2*r,2)}, v5, s[24:27], s38 offen')
    a('v_lshrrev_b32 v7, 2, v0')
    a('v_lshlrev_b32 v7, 10, v7')
    a('v_and_b32 v8, 3, v0')
    a('v_lshl_add_u32 v7, v8, 6, v7')
    a('v_cndmask_b32 v7, v6, v7, vcc')
    a('s_lshr_b32 s39, s2, 2')
    a('s_mul_i32 s39, s39, 88064')
    a('s_and_b32 s47, s2, 3')
    a('s_lshl_b32 s47, s47, 8')
    a('s_add_u32 s39, s39, s47')
    a('v_and_b32 v8, 31, v0')
    a('v_lshlrev_b32 v9, 2, v3')
    a('v_sub_u32 v8, v8, v9')
    a('v_mov_b32 v9, 0xff800000')
    a('v_mov_b32 v10, 0')
    for r0 in range(0, 16, 4):
        for r in range(r0, r0+4):
            kr = (r & 3) + 8*(r >> 2)
            a(f'v_cmp_le_i32 s[{52+2*(r&3)}:{53+2*(r&3)}], {kr}, v8')
        for r in range(r0, r0+4):
            sp = f's[{52+2*(r&3)}:{53+2*(r&3)}]'
            a(f'v_cndmask_b32 v{MD+r}, v9, v10, {sp}')
            a(f'v_cndmask_b32 v{MF+r}, v10, v9, {sp}')
    a('s_sub_i32 s60, 8, s33')
    a('s_max_i32 s60, s60, 0')
    NPEND = 18 + 8
    S = [S0, S1]
    def qk(j, cin):
        a(f'v_mfma_f32_32x32x16_bf16 {vr(S[j%2],16)}, {vr(K+4*j,4)}, {vr(Q,4)}, {cin}')
    M = 11
    a(f's_waitcnt vmcnt({NPEND+8})')
    qk(8, vr(MD,16))
    for j in range(8, -1, -1):
        if j > 0:
            a(f's_waitcnt vmcnt({NPEND+j-1})')
            qk(j-1, vr(MF,16) if j-1 == 0 else '0')
        s = S[j%2]
        if j == 8:
            a(f'v_max_f32 v{M}, v{s}, v{s+1}')
            rng = range(2, 16, 2)
        else: rng = range(0, 16, 2)
        for r in rng:
            a(f'v_max3_f32 v{M}, v{s+r}, v{s+r+1}, v{M}')
        if j > 0:
            a(f's_cmp_eq_u32 s60, {j}')
            a('s_cbranch_scc1 kb_p1done')
    a('kb_p1done:')
    a('s_nop 7'); a('s_nop 3')
    a(f'v_mov_b32 v10, v{M}')
    a(f'v_permlane32_swap_b32 v{M}, v10')
    a(f'v_max_f32 v{M}, v{M}, v10')
    for r in range(16):
        a(f'v_sub_f32 v{MD+r}, v{MD+r}, v{M}')
    qk(8, vr(MD,16))
    for r in range(16):
        a(f'v_sub_f32 v{NM+r}, 0, v{M}')
    for r in range(16):
        a(f'v_sub_f32 v{MF+r}, v{MF+r}, v{M}')
    a('s_waitcnt vmcnt(0)')
    a('s_mov_b32 s61, 0x05040100')
    a('s_mov_b32 s62, 0x07060302')
    for c in range(4):
        src = c >> 1; sel = 's61' if c % 2 == 0 else 's62'
        for i in range(4):
            a(f'v_perm_b32 v{S1+4*c+i}, v{PK+2*(2*i+1)+src}, v{PK+2*(2*i)+src}, {sel}')
        a(f'buffer_store_dwordx4 {vr(S1+4*c,4)}, v7, s[48:51], s39 offen offset:{16*c}')
    for j in range(8, -1, -1):
        if j > 0:
            qk(j-1, vr(MF,16) if j-1 == 0 else vr(NM,16))
        s = S[j%2]; P = P0 + 8*(j % 2)
        for g in range(2):
            for r in range(8*g, 8*g+8):
                a(f'v_exp_f32 v{s+r}, v{s+r}')
            for r in range(4*g, 4*g+4):
                a(f'v_cvt_pk_bf16_f32 v{P+r}, v{s+2*r}, v{s+2*r+1}')
            cin = '0' if (j == 8 and g == 0) else vr(O,16)
            a(f'v_mfma_f32_32x32x16_bf16 {vr(O,16)}, {vr(V+8*j+4*g,4)}, {vr(P+4*g,4)}, {cin}')
        if j > 0:
            a(f's_cmp_eq_u32 s60, {j}')
            a('s_cbranch_scc1 kb_p2done')
    a('kb_p2done:')
    a('s_nop 7'); a('s_nop 3')
    a(f'v_rcp_f32 v10, v{O+8}')
    a('s_lshl_b32 s63, s33, 15')
    a('s_lshl_b32 s64, s34, 10')
    a('s_add_u32 s63, s63, s64')
    a(f's_add_u32 s63, s63, {WS_OF}')
    for r in range(8):
        a(f'v_mul_f32 v{O+r}, v{O+r}, v10')
    for r in range(4):
        a(f'v_cvt_pk_bf16_f32 v{P0+r}, v{O+2*r}, v{O+2*r+1}')
    a(f'buffer_store_dwordx4 {vr(P0,4)}, v2, s[20:23], s63 offen')
    a('kb_end:')
    a('s_endpgm')
    return name, kernel_desc(name, 256, 256), f'; @launch kernel={name} grid=(256,1,1) block=(512,1,1) lds=0'

C_WO = 65536
C_X = 131072
C_T = C_X + 8192
C_RS = 72
C_LDS = C_T + 4 * 32 * C_RS

def tr_lane_base(a, dst, half_s, t0, t1, hf_mul, hf_reg):
    a(f'v_bfe_u32 v{t0}, v0, 2, 2')
    a(f'v_lshrrev_b32 v{dst}, 1, v{t0}')
    a(f'v_xor_b32 v{dst}, s{half_s}, v{dst}')
    a(f'v_lshlrev_b32 v{dst}, 6, v{dst}')
    a(f'v_lshl_add_u32 v{dst}, v{t0}, 7, v{dst}')
    a(f'v_bfe_u32 v{t1}, v0, 4, 1')
    a(f'v_lshl_add_u32 v{dst}, v{t1}, 5, v{dst}')
    a(f'v_and_b32 v{t1}, 3, v0')
    a(f'v_lshl_add_u32 v{dst}, v{t1}, 3, v{dst}')
    a(f'v_mul_u32_u24 v{t1}, {hf_mul}, v{hf_reg}')
    a(f'v_add_u32 v{dst}, v{dst}, v{t1}')

def gen_C(a):
    name = 'kc_kernel'
    kernel_begin(a, name)
    a('s_cmp_ge_u32 s2, 256')
    a('s_cbranch_scc1 kc_end')
    a('s_load_dwordx2 s[4:5], s[0:1], 0')
    a('s_load_dwordx2 s[6:7], s[0:1], 16')
    a('s_load_dwordx2 s[8:9], s[0:1], 80')
    S_RB, S_CB, S_W = 28, 29, 30
    decode_rb_hg(a, S_RB, S_CB, 31, 32)
    a('v_lshrrev_b32 v1, 6, v0')
    a(f'v_readfirstlane_b32 s{S_W}, v1')
    a('v_and_b32 v1, 63, v0')
    a('v_lshlrev_b32 v2, 4, v1')
    a('v_bfe_u32 v3, v0, 5, 1')
    a('v_bfe_u32 v4, v0, 3, 3')
    a('v_and_b32 v5, 7, v0')
    a(f's_and_b32 s31, s{S_W}, 1')
    a(f's_lshr_b32 s32, s{S_W}, 1')
    a(f's_lshl_b32 s33, s{S_CB}, 7')
    a(f's_lshl_b32 s34, s{S_W}, 14')
    a('s_add_u32 s34, s34, s33')
    a('v_lshlrev_b32 v6, 10, v4')
    a('v_lshl_add_u32 v7, v5, 4, v6')
    a('v_add_u32 v7, s34, v7')
    a('v_add_u32 v8, 7168, v7')
    a('v_lshlrev_b32 v9, 1, v4')
    a('v_and_b32 v9, 4, v9')
    a('v_xor_b32 v9, v9, v5')
    a('v_lshl_add_u32 v9, v9, 4, v6')
    a(f's_lshl_b32 s34, s{S_W}, 15')
    a('s_add_u32 s34, s34, s33')
    a('v_add_u32 v10, s34, v9')
    a('v_add_u32 v11, 7168, v10')
    a('v_add_u32 v12, 7168, v11')
    a('v_add_u32 v13, 7168, v12')
    a(f's_lshl_b32 s35, s{S_RB}, 16')
    a('s_lshl_b32 s36, s31, 15')
    a('s_lshl_b32 s37, s32, 12')
    a('s_add_u32 s36, s36, s37')
    a('s_add_u32 s37, s36, s35')
    a(f's_add_u32 s37, s37, {WS_OF}')
    a(f's_lshl_b32 s38, s{S_W}, 12')
    a(f's_add_u32 s38, s38, {C_WO}')
    a(f's_lshl_b32 s39, s{S_W}, 11')
    a(f's_add_u32 m0, s39, {C_X}')
    a('s_waitcnt lgkmcnt(0)')
    srd(a, 12, 4, 2*MB)
    srd(a, 16, 6, 512*512*2)
    srd(a, 20, 8, 12*MB)
    a('buffer_load_dwordx4 v7, s[12:15], s35 offen lds')
    a('buffer_load_dwordx4 v8, s[12:15], s35 offen offset:1024 lds')
    for c in range(4):
        a(f's_add_u32 m0, s36, {c*8192}')
        a(f's_add_u32 s40, s37, {c*8192}')
        for i in range(4):
            a(f'buffer_load_dwordx4 v2, s[20:23], s40 offen offset:{1024*i} lds')
        a(f's_add_u32 m0, s38, {c*16384}')
        a(f's_mov_b32 s41, {c*131072}')
        for i in range(4):
            a(f'buffer_load_dwordx4 v{10+i}, s[16:19], s41 offen offset:{1024*i} lds')
    a('s_lshl_b32 s42, s31, 15')
    a('v_add_u32 v14, s42, v2')
    tr_lane_base(a, 15, 32, 4, 5, 512, 3)
    a(f'v_add_u32 v15, {C_WO}, v15')
    a('v_and_b32 v4, 31, v0')
    a('v_lshlrev_b32 v5, 7, v4')
    a('v_lshl_add_u32 v5, v3, 3, v5')
    a('s_lshl_b32 s43, s31, 12')
    a('s_lshl_b32 s44, s32, 6')
    a('s_add_u32 s43, s43, s44')
    a(f's_add_u32 s43, s43, {C_X}')
    a('v_add_u32 v5, s43, v5')
    ACC = 16
    FR = 32
    a('s_mov_b32 s45, 0xffff0000')
    for c in range(4):
        a(f's_waitcnt vmcnt({8*(3-c)})')
        a('s_barrier')
        if c == 0:
            for q in range(4):
                a(f'ds_read_b64 {vr(96+2*q,2)}, v5 offset:{16*q}')
        def rd(h):
            hh = 8*c + h; b = FR + 8*h
            a(f'ds_read_b128 {vr(b,4)}, v14 offset:{hh*1024}')
            for j in range(2):
                a(f'ds_read_b64_tr_b16 {vr(b+4+2*j,2)}, v15 offset:{hh*2048+j*1024}')
        for h in range(4): rd(h)
        if c == 0:
            a('s_waitcnt lgkmcnt(12)')
            for q in range(8):
                a(f'v_lshlrev_b32 v{ACC+2*q}, 16, v{96+q}')
                a(f'v_and_b32 v{ACC+2*q+1}, s45, v{96+q}')
        for h in range(8):
            pend = min(h+4, 8) - h - 1
            a(f's_waitcnt lgkmcnt({3*pend})')
            b = FR + 8*h
            a(f'v_mfma_f32_32x32x16_bf16 {vr(ACC,16)}, {vr(b+4,4)}, {vr(b,4)}, {vr(ACC,16)}')
            if h + 4 < 8: rd(h+4)
    a(f's_mul_i32 s46, s{S_W}, {32*C_RS}')
    a(f's_add_u32 s46, s46, {C_T}')
    a(f'v_mul_u32_u24 v6, {C_RS}, v4')
    a('v_lshl_add_u32 v6, v3, 3, v6')
    a('v_add_u32 v6, s46, v6')
    a('v_bfe_u32 v7, v0, 4, 2')
    a('v_bfe_u32 v8, v0, 2, 2')
    a('v_lshl_add_u32 v7, v7, 3, v8')
    a(f'v_mul_u32_u24 v7, {C_RS}, v7')
    a('v_and_b32 v8, 3, v0')
    a('v_lshl_add_u32 v7, v8, 3, v7')
    a('v_add_u32 v7, s46, v7')
    a('s_lshl_b32 s47, s31, 15')
    a('s_add_u32 s47, s47, s35')
    a(f's_lshl_b32 s48, s{S_CB}, 12')
    a('s_add_u32 s47, s47, s48')
    a('s_lshl_b32 s48, s32, 11')
    a('s_add_u32 s47, s47, s48')
    a(f's_add_u32 s47, s47, {WS_HF}')
    a(f's_lshl_b32 s49, s{S_RB}, 9')
    a('s_lshl_b32 s48, s31, 8')
    a('s_add_u32 s49, s49, s48')
    a(f's_add_u32 s49, s49, {WS_ST}')
    a('v_lshlrev_b32 v9, 3, v4')
    a('v_lshl_add_u32 v9, v3, 2, v9')
    P = 32
    for q in range(4):
        a(f'v_cvt_pk_bf16_f32 v{P+2*q}, v{ACC+4*q}, v{ACC+4*q+1}')
        a(f'v_cvt_pk_bf16_f32 v{P+2*q+1}, v{ACC+4*q+2}, v{ACC+4*q+3}')
        a(f'ds_write_b64 v6, {vr(P+2*q,2)} offset:{16*q}')
    a(f'v_add_f32 v10, v{ACC}, v{ACC+1}')
    a(f'v_mul_f32 v11, v{ACC}, v{ACC}')
    a(f'v_fmac_f32 v11, v{ACC+1}, v{ACC+1}')
    a('s_waitcnt lgkmcnt(0)')
    for db in range(2):
        for j in range(2):
            a(f'ds_read_b64_tr_b16 {vr(40+4*db+2*j,2)}, v7 offset:{db*32+j*4*C_RS}')
    for r in range(2, 16):
        a(f'v_add_f32 v10, v10, v{ACC+r}')
        a(f'v_fmac_f32 v11, v{ACC+r}, v{ACC+r}')
    a('s_waitcnt lgkmcnt(0)')
    a(f'buffer_store_dwordx4 v[40:43], v2, s[20:23], s47 offen')
    a(f'buffer_store_dwordx4 v[44:47], v2, s[20:23], s47 offen offset:1024')
    a('v_permlane32_swap_b32 v10, v11')
    a('v_add_f32 v10, v10, v11')
    a('buffer_atomic_add_f32 v10, v9, s[20:23], s49 offen')
    a('kc_end:')
    a('s_endpgm')
    return name, kernel_desc(name, 104, 104), f'; @launch kernel={name} grid=(256,1,1) block=(256,1,1) lds={C_LDS}'

D_RED = 16384
D_LDS = D_RED + 4*4*3*1024
def gen_D(a):
    name = 'kd_kernel'
    kernel_begin(a, name)
    a('s_cmp_ge_u32 s2, 256')
    a('s_cbranch_scc1 kd_end')
    a('s_load_dwordx2 s[6:7], s[0:1], 40')
    a('s_load_dwordx2 s[8:9], s[0:1], 80')
    S_DB, S_FT, S_W = 28, 29, 30
    a('s_and_b32 s31, s2, 7')
    a('s_lshr_b32 s32, s2, 3')
    a('s_and_b32 s33, s31, 1')
    a('s_lshl_b32 s33, s33, 2')
    a('s_and_b32 s34, s32, 3')
    a(f's_add_u32 s{S_DB}, s33, s34')
    a('s_lshr_b32 s31, s31, 1')
    a('s_lshr_b32 s32, s32, 2')
    a('s_min_u32 s33, s31, 1')
    a('s_add_u32 s34, s32, s33')
    a('s_cmp_ge_u32 s34, 8')
    a('s_cbranch_scc1 kd_end')
    a('s_mul_i32 s31, s31, 7')
    a(f's_add_u32 s{S_FT}, s31, s34')
    a('v_lshrrev_b32 v1, 6, v0')
    a(f'v_readfirstlane_b32 s{S_W}, v1')
    a('v_and_b32 v1, 63, v0')
    a('v_lshlrev_b32 v2, 4, v1')
    a(f's_lshl_b32 s35, s{S_W}, 19')
    a(f's_lshl_b32 s36, s{S_DB}, 12')
    a('s_add_u32 s35, s35, s36')
    a(f's_add_u32 s35, s35, {WS_HF}')
    a(f's_mul_i32 s36, s{S_W}, {16*88064}')
    a(f's_mul_i32 s37, s{S_FT}, 3072')
    a('s_add_u32 s36, s36, s37')
    a('v_lshlrev_b32 v3, 6, v0')
    a(f's_mov_b32 s38, {WS_ST}')
    a('v_bfe_u32 v4, v0, 4, 2')
    a('v_lshlrev_b32 v5, 3, v4')
    a(f's_mul_i32 s39, s{S_FT}, 96')
    a('s_waitcnt lgkmcnt(0)')
    srd(a, 16, 6, 1376*2)
    srd(a, 20, 8, 12*MB)
    srd(a, 24, 8, W1P_BYTES + 4096, WS_W1P)
    H = 64
    N = [192, 208]
    ST = [224, 240]
    BI = 56
    RING = 8
    WA = 48
    for i in range(4):
        a(f'buffer_load_dwordx4 {vr(16+4*i,4)}, v3, s[20:23], s38 offen offset:{16*i}')
    for t in range(3):
        a(f'buffer_load_dwordx2 {vr(BI+2*t,2)}, v5, s[16:19], s39 offen offset:{32*t}')
    def loads(i):
        lst = []
        if i: lst.append('s_add_u32 s35, s35, 32768'); lst.append('s_add_u32 s36, s36, 88064')
        for t in range(4):
            lst.append(f'buffer_load_dwordx4 {vr(H+16*(i%RING)+4*t,4)}, v2, s[20:23], s35 offen offset:{1024*t}')
        for t in range(3):
            lst.append(f'buffer_load_dwordx4 {ar(WA+12*i+4*t,4)}, v2, s[24:27], s36 offen offset:{1024*t}')
        return lst
    for i in range(RING):
        for x in loads(i): a(x)
    a(f's_waitcnt vmcnt({7*RING+3})')
    a(f's_mov_b32 s40, {hx(f32(1/512))}')
    a(f's_mov_b32 s41, {hx(f32(1e-5))}')
    for i in range(8):
        sm, sq = 16+2*i, 17+2*i
        a(f'v_mul_f32 v{sm}, s40, v{sm}')
        a(f'v_mul_f32 v{sq}, s40, v{sq}')
        a(f'v_fma_f32 v{sq}, -v{sm}, v{sm}, v{sq}')
        a(f'v_max_f32 v{sq}, 0, v{sq}')
        a(f'v_add_f32 v32, s41, v{sq}')
        a(f'v_rsq_f32 v32, v32')
        a(f'v_mul_f32 v33, v32, v32')
        a(f'v_fma_f32 v33, v33, v{sq}, s41')
        a(f'v_rsq_f32 v33, v33')
        a(f'v_mul_f32 v32, v32, v33')
        a(f'v_mul_f32 v{sq}, -v{sm}, v32')
        a(f'v_mov_b32 v{sm}, v32')
    for i in range(4):
        a(f'ds_write_b128 v3, {vr(16+4*i,4)} offset:{16*i}')
    a(f's_lshl_b32 s42, s{S_W}, 12')
    a('v_lshlrev_b32 v6, 6, v4')
    a('v_add_u32 v6, s42, v6')
    a('s_mov_b32 s43, 0xffff0000')
    a('s_waitcnt lgkmcnt(0)')
    def streads(i):
        return [f'ds_read_b128 {vr(ST[i%2]+4*q,4)}, v6 offset:{i*256+16*q}' for q in range(4)]
    def norm(i):
        lst = []
        st = ST[i%2]
        for t in range(4):
            for q in range(4):
                x = H + 16*(i%RING) + 4*t + q
                t0, t1 = (32, 33) if q % 2 == 0 else (34, 35)
                lst.append(f'v_lshlrev_b32 v{t0}, 16, v{x}')
                lst.append(f'v_and_b32 v{t1}, s43, v{x}')
                lst.append(f'v_fma_f32 v{t0}, v{t0}, v{st+4*q}, v{st+4*q+1}')
                lst.append(f'v_fma_f32 v{t1}, v{t1}, v{st+4*q+2}, v{st+4*q+3}')
                lst.append(f'v_cvt_pk_bf16_f32 v{N[i%2]+4*t+q}, v{t0}, v{t1}')
        return lst
    def mf(i):
        lst = []
        for t in range(4):
            for u in range(3):
                acc = ar(12*t+4*u, 4)
                cin = '0' if i == 0 else acc
                lst.append(f'v_mfma_f32_16x16x32_bf16 {acc}, {ar(WA+12*i+4*u,4)}, {vr(N[i%2]+4*t,4)}, {cin}')
        return lst
    for x in streads(0): a(x)
    issued = RING
    for i in range(17):
        m = mf(i-1) if i > 0 else []
        if i < 16:
            a(f's_waitcnt vmcnt({7*(issued-1-i)}) lgkmcnt(0)')
            nv = norm(i)
            extra = streads(i+1) if i+1 < 16 else []
            for x in extra: a(x)
            k = 0
            for mm in m:
                a(mm)
                for _ in range(7):
                    if k < len(nv): a(nv[k]); k += 1
            while k < len(nv): a(nv[k]); k += 1
            if issued < 16:
                for x in loads(issued): a(x)
                issued += 1
        else:
            for mm in m: a(mm)
    a(f's_mul_i32 s44, s{S_W}, 12288')
    a(f's_add_u32 s44, s44, {D_RED}')
    a('v_add_u32 v7, s44, v2')
    a(f's_mul_i32 s45, s{S_W}, 3072')
    a(f's_add_u32 s45, s45, {D_RED}')
    a('v_add_u32 v8, s45, v2')
    a('s_nop 7')
    for t in range(4):
        for u in range(3):
            a(f'ds_write_b128 v7, {ar(12*t+4*u,4)} offset:{t*3072+u*1024}')
    a('s_waitcnt lgkmcnt(0)')
    a('s_barrier')
    R = 64
    for s in range(4):
        for u in range(3):
            a(f'ds_read_b128 {vr(R+12*s+4*u,4)}, v8 offset:{s*12288+u*1024}')
    for u in range(3):
        for h in range(2):
            a(f'v_lshlrev_b32 v{16+4*u+2*h}, 16, v{BI+2*u+h}')
            a(f'v_and_b32 v{16+4*u+2*h+1}, s43, v{BI+2*u+h}')
    a('v_and_b32 v9, 15, v0')
    a('v_lshlrev_b32 v9, 4, v9')
    a('v_lshrrev_b32 v10, 1, v4')
    a('v_lshl_add_u32 v9, v10, 9, v9')
    a('v_and_b32 v10, 1, v4')
    a('v_lshl_add_u32 v9, v10, 3, v9')
    a(f's_mul_i32 s46, s{S_FT}, {3*16384}')
    a(f's_lshl_b32 s47, s{S_DB}, 11')
    a('s_add_u32 s46, s46, s47')
    a(f's_lshr_b32 s47, s{S_W}, 1')
    a('s_lshl_b32 s47, s47, 10')
    a('s_add_u32 s46, s46, s47')
    a(f's_and_b32 s47, s{S_W}, 1')
    a('s_lshl_b32 s47, s47, 8')
    a('s_add_u32 s46, s46, s47')
    srd(a, 48, 8, UF_BYTES, WS_UF)
    c2 = -2*0.7978845608028654*LOG2E
    a(f's_mov_b32 s52, {hx(f32(c2*0.044715))}')
    a(f'v_mov_b32 v30, {hx(f32(c2))}')
    for s in range(4):
        a(f's_waitcnt lgkmcnt({3*(3-s)})')
        for r in range(12):
            a(f'v_add_f32 v{16+r}, v{16+r}, v{R+12*s+r}')
    for r in range(12):
        a(f'v_mul_f32 v{32+r}, v{16+r}, v{16+r}')
    for r in range(12):
        a(f'v_fma_f32 v{32+r}, v{32+r}, s52, v30')
    for r in range(12):
        a(f'v_mul_f32 v{32+r}, v{32+r}, v{16+r}')
    for r in range(12):
        a(f'v_exp_f32 v{32+r}, v{32+r}')
    for r in range(12):
        a(f'v_add_f32 v{32+r}, 1.0, v{32+r}')
    for r in range(12):
        a(f'v_rcp_f32 v{32+r}, v{32+r}')
    for r in range(12):
        a(f'v_mul_f32 v{16+r}, v{16+r}, v{32+r}')
    for u in range(3):
        a(f'v_cvt_pk_bf16_f32 v{44+2*u}, v{16+4*u}, v{16+4*u+1}')
        a(f'v_cvt_pk_bf16_f32 v{44+2*u+1}, v{16+4*u+2}, v{16+4*u+3}')
        if u: a('s_add_u32 s46, s46, 16384')
        a(f'buffer_store_dwordx2 {vr(44+2*u,2)}, v9, s[48:51], s46 offen')
    a('kd_end:')
    a('s_endpgm')
    return name, kernel_desc(name, 496, 256), f'; @launch kernel={name} grid=(256,1,1) block=(256,1,1) lds={D_LDS}'

E_NSLOT = 9
E_SLOT = 16384
E_LDS = E_NSLOT * E_SLOT
E_NCH = 22
def gen_E(a):
    name = 'ke_kernel'
    kernel_begin(a, name)
    a('s_cmp_ge_u32 s2, 256')
    a('s_cbranch_scc1 ke_end')
    a('s_load_dwordx4 s[4:7], s[0:1], 48')
    a('s_load_dwordx2 s[10:11], s[0:1], 64')
    a('s_load_dwordx2 s[8:9], s[0:1], 80')
    S_RB, S_CB, S_W = 28, 29, 30
    decode_rb_hg(a, S_RB, S_CB, 31, 32)
    a('v_lshrrev_b32 v1, 6, v0')
    a(f'v_readfirstlane_b32 s{S_W}, v1')
    a('v_and_b32 v1, 63, v0')
    a('v_lshlrev_b32 v2, 4, v1')
    a('v_bfe_u32 v3, v0, 5, 1')
    a('v_bfe_u32 v4, v0, 3, 3')
    a('v_and_b32 v5, 7, v0')
    a(f's_and_b32 s31, s{S_W}, 1')
    a(f's_lshr_b32 s32, s{S_W}, 1')
    a(f's_lshl_b32 s33, s{S_W}, 14')
    a(f's_lshl_b32 s34, s{S_CB}, 11')
    a('s_add_u32 s33, s33, s34')
    a('v_lshlrev_b32 v6, 1, v4')
    a('v_and_b32 v6, 4, v6')
    a('v_xor_b32 v6, v6, v5')
    a('v_lshlrev_b32 v6, 4, v6')
    a('v_lshl_add_u32 v6, v4, 12, v6')
    a(f's_lshl_b32 s34, s{S_W}, 16')
    a(f's_lshl_b32 s35, s{S_RB}, 7')
    a('s_add_u32 s34, s34, s35')
    a('v_add_u32 v6, s34, v6')
    a('v_add_u32 v7, 31744, v6')
    a(f's_lshl_b32 s36, s{S_W}, 11')
    a('s_mov_b32 s37, 0')
    a('v_bfe_u32 v8, v0, 4, 1')
    a('v_lshlrev_b32 v8, 10, v8')
    a('v_lshl_add_u32 v8, v3, 8, v8')
    a('v_and_b32 v9, 15, v0')
    a('v_lshl_add_u32 v8, v9, 4, v8')
    a(f's_lshl_b32 s38, s{S_RB}, 16')
    a('s_lshl_b32 s39, s31, 15')
    a('s_add_u32 s38, s38, s39')
    a(f's_lshl_b32 s39, s{S_CB}, 12')
    a('s_add_u32 s38, s38, s39')
    a('s_lshl_b32 s39, s32, 11')
    a('s_add_u32 s38, s38, s39')
    a(f's_add_u32 s38, s38, {WS_HF}')
    a('v_and_b32 v10, 31, v0')
    a('v_lshlrev_b32 v11, 1, v10')
    a('s_lshl_b32 s39, s31, 6')
    a('s_add_u32 s39, s39, s35')
    a('s_waitcnt lgkmcnt(0)')
    srd(a, 12, 4, 1376*2048*2)
    srd(a, 16, 6, 4096)
    srd(a, 20, 8, 12*MB)
    srd(a, 24, 8, UF_BYTES, WS_UF)
    srd(a, 44, 10, 2*MB)
    HFR = 48
    a('buffer_load_ushort v12, v11, s[16:19], s39 offen')
    a(f'buffer_load_dwordx4 {vr(HFR,4)}, v8, s[20:23], s38 offen')
    a(f'buffer_load_dwordx4 {vr(HFR+4,4)}, v8, s[20:23], s38 offen offset:512')
    def dma(c):
        slot = c % E_NSLOT
        lst = []
        if c:
            lst.append('s_add_u32 s33, s33, 65536')
            lst.append('s_add_u32 s37, s37, 262144')
        lst.append(f's_add_u32 m0, s36, {slot*E_SLOT}')
        lst.append('buffer_load_dwordx4 v2, s[24:27], s33 offen lds')
        lst.append('buffer_load_dwordx4 v2, s[24:27], s33 offen offset:1024 lds')
        lst.append(f's_add_u32 m0, s36, {slot*E_SLOT+8192}')
        lst.append('buffer_load_dwordx4 v6, s[12:15], s37 offen lds')
        lst.append('buffer_load_dwordx4 v7, s[12:15], s37 offen offset:1024 lds')
        return lst
    for c in range(E_NSLOT):
        for x in dma(c): a(x)
    a('s_lshl_b32 s40, s32, 10')
    a('v_add_u32 v13, s40, v2')
    tr_lane_base(a, 16, 31, 4, 5, 1024, 3)
    a('v_add_u32 v16, 8192, v16')
    for k in (1, 2):
        a(f'v_add_u32 v{13+k}, {k*3*E_SLOT}, v13')
        a(f'v_add_u32 v{16+k}, {k*3*E_SLOT}, v16')
    IDF = 56
    a('v_lshlrev_b32 v4, 3, v3')
    a('v_sub_u32 v4, v10, v4')
    a('v_mov_b32 v5, 0x3f80')
    a('v_mov_b32 v9, 0x3f800000')
    for t in range(2):
        for i in range(4):
            a(f'v_cmp_eq_u32 s[52:53], {16*t+2*i}, v4')
            a(f'v_cmp_eq_u32 s[54:55], {16*t+2*i+1}, v4')
            a(f'v_cndmask_b32 v{IDF+4*t+i}, 0, v5, s[52:53]')
            a(f'v_cndmask_b32 v{IDF+4*t+i}, v{IDF+4*t+i}, v9, s[54:55]')
    ACC = 32
    a(f's_waitcnt vmcnt({4*E_NSLOT})')
    a('v_lshlrev_b32 v12, 16, v12')
    for r in range(16): a(f'v_mov_b32 v{ACC+r}, v12')
    for t in range(2):
        a(f'v_mfma_f32_32x32x16_bf16 {vr(ACC,16)}, {vr(HFR+4*t,4)}, {vr(IDF+4*t,4)}, {vr(ACC,16)}')
    SET = [64, 96]
    def nst(c): return 2 if c == E_NCH-1 else 4
    def reads(c):
        slot = c % E_NSLOT; k = slot // 3; so = (slot % 3) * E_SLOT; b = SET[c % 2]
        lst = []
        for t in range(nst(c)):
            lst.append(f'ds_read_b128 {vr(b+8*t,4)}, v{13+k} offset:{so+t*2048}')
            for j in range(2):
                lst.append(f'ds_read_b64_tr_b16 {vr(b+8*t+4+2*j,2)}, v{16+k} offset:{so+t*2048+j*512}')
        return lst
    def mfm(c):
        b = SET[c % 2]
        return [f'v_mfma_f32_32x32x16_bf16 {vr(ACC,16)}, {vr(b+8*t,4)}, {vr(b+8*t+4,4)}, {vr(ACC,16)}' for t in range(nst(c))]
    issued = E_NSLOT
    for c in range(E_NCH):
        a(f's_waitcnt vmcnt({4*(issued-1-c)}) lgkmcnt(0)')
        a('s_barrier')
        r = reads(c)
        if c >= 1 and issued < E_NCH:
            r = r + dma(issued); issued += 1
        m = mfm(c-1) if c else []
        k = 0
        for mm in m:
            a(mm)
            for _ in range(5):
                if k < len(r): a(r[k]); k += 1
        while k < len(r): a(r[k]); k += 1
    a('v_lshlrev_b32 v4, 10, v10')
    a('v_lshl_add_u32 v4, v3, 4, v4')
    a(f's_lshl_b32 s41, s{S_RB}, 16')
    a('s_lshl_b32 s42, s31, 15')
    a('s_add_u32 s41, s41, s42')
    a(f's_lshl_b32 s42, s{S_CB}, 7')
    a('s_add_u32 s41, s41, s42')
    a('s_lshl_b32 s42, s32, 6')
    a('s_add_u32 s41, s41, s42')
    a('s_waitcnt lgkmcnt(0)')
    for mm in mfm(E_NCH-1): a(mm)
    P = 48
    for q in range(8):
        a(f'v_cvt_pk_bf16_f32 v{P+q}, v{ACC+2*q}, v{ACC+2*q+1}')
    for pr in range(2):
        b = P + 4*pr
        a(f'v_permlane32_swap_b32 v{b}, v{b+2}')
        a(f'v_permlane32_swap_b32 v{b+1}, v{b+3}')
        a(f'buffer_store_dwordx4 {vr(b,4)}, v4, s[44:47], s41 offen offset:{32*pr}')
    a('ke_end:')
    a('s_endpgm')
    return name, kernel_desc(name, 128, 128), f'; @launch kernel={name} grid=(256,1,1) block=(256,1,1) lds={E_LDS}'

def main(out):
    a = Asm()
    ks = [g(a) for g in (gen_A, gen_B, gen_C, gen_D, gen_E)]
    hdr = '; generated by gen1.py (hand-written generator)\n' + '\n'.join(k[2] for k in ks) + '\n'
    body = a.finish()
    txt = hdr + '.amdgcn_target "amdgcn-amd-amdhsa--gfx950"\n' + body + ''.join(k[1] for k in ks)
    open(out, 'w').write(txt)

if __name__ == '__main__':
    main(sys.argv[1] if len(sys.argv) > 1 else f'cdna_kernels/{NAME}.s')
```

```python
import sys, struct, math, os
from asmlib import Asm

NAME = 'sequential_preLN__sliding_block__mixer_token_mlp__prompt'
MB = 1 << 20
WS_KV, WS_OF, WS_HF, WS_UF, WS_XS, WS_FL = 0, 4*MB, 6*MB, 8*MB, 9*MB + 512*1024, 9*MB + 768*1024
UF_BYTES = 86*16*1024
FL_W0 = WS_FL
FL_X = WS_FL + 0x1000
FL_O = WS_FL + 0x2000
FL_H = WS_FL + 0x3000
FL_U = WS_FL + 0x4000
FL_KV = WS_FL + 0x8000
WS_SIZE = 10*MB
WS_STAMP = 32*MB

XROW = 1040
L_WR = 64*XROW; NSLOT = 7; SLOT = 12288
L_XT = L_WR + NSLOT*SLOT
L_SY = 163584
LDS_BYTES = 163840
L_WO = 0
L_W1S = 65536
L_XCH = 114688
L_RA = 0
L_RB = 114688
(SY_V, SY_KV, SY_WO, SY_O, SY_FAST, SY_X0, SY_X1, SY_X2, SY_X3, SY_H, SY_RED, SY_U, SY_S0, SY_S1, SY_T0, SY_T1,
 SY_R0, SY_R1, SY_E0, SY_E1, SY_E2, SY_E3, SY_GO) = [4*i for i in range(23)]

def f32(x): return struct.unpack('<I', struct.pack('<f', x))[0]
def hx(x): return '0x%08x' % (x & 0xffffffff)
LOG2E = math.log2(math.e)
def vr(b, n=1): return f'v{b}' if n == 1 else f'v[{b}:{b+n-1}]'

OPT = dict(stamp=False, fast=True, touch=True, w2go='early', drot=0)

S_W, S_TAG, S_RB, S_HG, S_Q = 3, 4, 5, 6, 7
R_WS, R_X, R_WQ, R_WO, R_W1, R_W2, R_B1, R_B2, R_OUT = 8, 12, 16, 20, 24, 28, 32, 36, 40
S_DB, S_FT, S_FAST, S_TO = 44, 45, 46, 47
S_MASK = 64
def srd(b): return f's[{b}:{b+3}]'

def interleave(a, main, fill, per):
    k = 0
    for i, m in enumerate(main):
        a(m)
        n = per[i] if isinstance(per, list) else per
        for _ in range(n):
            if k < len(fill): a(fill[k]); k += 1
    while k < len(fill): a(fill[k]); k += 1

class G:
    def __init__(self):
        self.a = Asm(); self.nst = 0
    def stamp(self, idx):
        if not OPT['stamp']: return
        a = self.a
        a('s_memtime s[98:99]')
        a('s_waitcnt lgkmcnt(0)')
        a(f'v_writelane_b32 v255, s98, {idx}')
    def stamp_fin(self):
        if not OPT['stamp']: return
        a = self.a
        a('s_waitcnt vmcnt(0)')
        self.stamp(61)
        a('s_memrealtime s[98:99]')
        a('s_waitcnt lgkmcnt(0)')
        a('v_writelane_b32 v255, s98, 63')
        a('v_lshlrev_b32 v3, 2, v0')
        a('s_lshl_b32 s48, s2, 11')
        a(f's_add_u32 s48, s48, {WS_STAMP}')
        a(f's_mov_b32 s{R_WS+2}, {64*MB}')
        a(f'buffer_store_dword v255, v3, {srd(R_WS)}, s48 offen')
    def arrive(self, off, tmp=3):
        a = self.a
        a(f'v_mov_b32 v{tmp}, 1')
        a('s_mov_b64 exec, 1')
        a(f'ds_add_u32 v1, v{tmp} offset:{off}')
        a('s_mov_b64 exec, -1')
    def arrive_dyn(self, addr, tmp=3):
        a = self.a
        a(f'v_mov_b32 v{tmp}, 1')
        a('s_mov_b64 exec, 1')
        a(f'ds_add_u32 v{addr}, v{tmp}')
        a('s_mov_b64 exec, -1')
    def wait(self, off, n, tmp=3, sleep=False, addr=1):
        a = self.a; L = a.label('lw')
        a(f'{L}:')
        a(f'ds_read_b32 v{tmp}, v{addr} offset:{off}')
        a('s_waitcnt lgkmcnt(0)')
        a(f'v_readfirstlane_b32 s48, v{tmp}')
        a(f's_cmp_lt_u32 s48, {n}')
        self.retry(L, sleep)
    def retry(self, L, sleep=False):
        a = self.a; Ld = a.label('lwd')
        a(f's_cbranch_scc0 {Ld}')
        if sleep: a('s_sleep 1')
        a(f's_sub_u32 s{S_TO}, s{S_TO}, 1')
        a(f's_cbranch_scc0 {L}')
        a(f's_mov_b32 s{S_TO}, 0')
        a(f'{Ld}:')
    def arrive_last(self, off, skip_label, tmp=3):
        a = self.a
        a(f'v_mov_b32 v{tmp}, 1')
        a('s_mov_b64 exec, 1')
        a(f'ds_add_rtn_u32 v{tmp}, v1, v{tmp} offset:{off}')
        a('s_mov_b64 exec, -1')
        a('s_waitcnt lgkmcnt(0)')
        a(f'v_readfirstlane_b32 s48, v{tmp}')
        a('s_cmp_lg_u32 s48, 3')
        a(f's_cbranch_scc1 {skip_label}')
    def poll(self, vaddr, soff, tmp=3):
        a = self.a; L = a.label('pl'); Ld = a.label('pd')
        a(f'{L}:')
        a(f'buffer_load_dword v{tmp}, v{vaddr}, {srd(R_WS)}, {soff} offen sc1')
        a('s_waitcnt vmcnt(0)')
        a(f'v_cmp_ne_u32 vcc, s{S_TAG}, v{tmp}')
        a('s_cmp_eq_u64 vcc, 0')
        a(f's_cbranch_scc1 {Ld}')
        a(f's_sub_u32 s{S_TO}, s{S_TO}, 1')
        a(f's_cbranch_scc0 {L}')
        a(f's_mov_b32 s{S_TO}, 0')
        a(f'{Ld}:')
    def store_fs(self, instrs):
        a = self.a
        if not OPT['fast']:
            for x in instrs: a(x + ' sc1')
            return
        Lf = a.label('sf'); Ld = a.label('sd')
        a(f's_cmp_lg_u32 s{S_FAST}, 0')
        a(f's_cbranch_scc1 {Lf}')
        for x in instrs: a(x + ' sc1')
        a(f's_branch {Ld}')
        a(f'{Lf}:')
        for x in instrs: a(x)
        a(f'{Ld}:')

def mk_srd(a, d, ptr, nbytes):
    a(f's_mov_b32 s{d}, s{ptr}')
    a(f's_mov_b32 s{d+1}, s{ptr+1}')
    a(f's_mov_b32 s{d+2}, {hx(nbytes)}')
    a(f's_mov_b32 s{d+3}, 0x00020000')

Q0, Q1, KB, VB, S0, S1, NM0, NM1, PB, O0, O1 = 12, 16, 20, 60, 140, 156, 172, 188, 204, 220, 236

def gen():
    g = G(); a = g.a
    kn = NAME + '_kernel'
    a.raw('.text'); a.raw(f'.globl {kn}'); a.raw('.p2align 8'); a.raw(f'.type {kn},@function'); a.raw(f'{kn}:'); a.raw('L_codestart:')
    a('s_cmp_ge_u32 s2, 256')
    a('s_cbranch_scc1 L_end')
    a('s_load_dwordx16 s[64:79], s[0:1], 0')
    a('s_load_dwordx2 s[80:81], s[0:1], 64')
    a('s_load_dwordx2 s[82:83], s[0:1], 80')
    if OPT['stamp']:
        a('v_mov_b32 v255, 0')
        a('s_memrealtime s[96:97]')
        a('s_memtime s[98:99]')
    a('s_getpc_b64 s[84:85]')
    a('s_and_b32 s48, s2, 7')
    a('s_lshr_b32 s49, s2, 3')
    a(f's_lshl_b32 s{S_RB}, s48, 2')
    a('s_lshr_b32 s50, s49, 3')
    a(f's_add_u32 s{S_RB}, s{S_RB}, s50')
    a(f's_and_b32 s{S_HG}, s49, 7')
    a('s_and_b32 s50, s48, 1')
    a('s_lshl_b32 s50, s50, 2')
    a('s_and_b32 s51, s49, 3')
    a(f's_add_u32 s{S_DB}, s50, s51')
    a('s_lshr_b32 s50, s48, 1')
    a('s_lshr_b32 s51, s49, 2')
    a('s_min_u32 s52, s50, 1')
    a('s_add_u32 s51, s51, s52')
    a('s_mul_i32 s50, s50, 7')
    a(f's_add_u32 s{S_FT}, s50, s51')
    a('s_cmp_ge_u32 s51, 8')
    a(f's_cselect_b32 s{S_FT}, 64, s{S_FT}')
    a(f's_mov_b32 s{S_TO}, 0x20000')
    a('v_lshrrev_b32 v1, 6, v0')
    a(f'v_readfirstlane_b32 s{S_W}, v1')
    a('v_and_b32 v3, 63, v0')
    a('v_lshlrev_b32 v2, 4, v3')
    a(f'v_mov_b32 v1, {L_SY}')
    a(f's_and_b32 s{S_Q}, s{S_W}, 3')
    a('v_lshrrev_b32 v6, 3, v0')
    a('v_and_b32 v7, 7, v0')
    a('v_lshlrev_b32 v4, 10, v6')
    a('v_lshl_add_u32 v4, v7, 4, v4')
    a(f's_lshl_b32 s53, s{S_RB}, 16')
    a(f'v_mul_u32_u24 v5, {XROW}, v6')
    a('v_lshl_add_u32 v5, v7, 4, v5')
    a('v_and_b32 v8, 31, v6')
    a('v_mul_u32_u24 v8, 3072, v8')
    a('v_lshlrev_b32 v9, 1, v6')
    a('v_and_b32 v9, 4, v9')
    a('v_xor_b32 v9, v9, v7')
    a(f's_lshl_b32 s54, s{S_HG}, 7')
    a('v_add_u32 v8, s54, v8')
    a('v_xor_b32 v10, 2, v9')
    a('v_lshl_add_u32 v10, v10, 4, v8')
    a('v_lshl_add_u32 v9, v9, 4, v8')
    a('v_lshlrev_b32 v11, 7, v3')
    a('v_mov_b32 v12, 0')
    a('v_lshl_add_u32 v13, v3, 2, v1')
    a('s_waitcnt lgkmcnt(0)')
    if OPT['stamp']:
        a('v_writelane_b32 v255, s96, 62')
        a('v_writelane_b32 v255, s98, 0')
    mk_srd(a, R_WS, 82, WS_SIZE)
    mk_srd(a, R_X, 64, 2*MB)
    mk_srd(a, R_WQ, 66, 512*1536*2)
    X = 20
    if OPT['touch']:
        a(f's_cmp_lg_u32 s{S_W}, 0')
        a('s_cbranch_scc1 L_not0')
        a(f's_lshl_b32 s55, s{S_HG}, 13')
        a('s_add_u32 s55, s55, s53')
        a(f'buffer_load_dword v14, v11, {srd(R_X)}, s55 offen')
        a('L_not0:')
        a(f's_cmp_lg_u32 s{S_W}, 1')
        a('s_cbranch_scc1 L_not1')
        a('s_mul_i32 s55, s2, 6144')
        a('s_mov_b32 exec_hi, 0xffff')
        a(f'buffer_load_dword v14, v11, {srd(R_WQ)}, s55 offen')
        a('s_mov_b64 exec, -1')
        a('L_not1:')
        a(f's_cmp_lg_u32 s{S_W}, 2')
        a('s_cbranch_scc1 L_not2')
        a('s_and_b32 s84, s84, 0xffffff00')
        a('s_lshl_b32 s55, s49, 11')
        a('v_add_u32 v14, s55, v11')
        a('v_cmp_gt_u32 vcc, CODE_BYTES, v14')
        a('s_and_b64 vcc, vcc, 0xffff')
        a('s_and_saveexec_b64 s[86:87], vcc')
        a('s_cbranch_execz L_nocode')
        a('global_load_dword v14, v14, s[84:85]')
        a('L_nocode:')
        a('s_mov_b64 exec, -1')
        a('L_not2:')
    a(f's_mov_b32 s55, {FL_W0}')
    a(f'buffer_load_dword v15, v12, {srd(R_WS)}, s55 offen sc1')
    for i in range(8):
        a(f'buffer_load_dwordx4 {vr(X+4*i,4)}, v4, {srd(R_X)}, s53 offen offset:{128*i}')
    a(f's_lshl_b32 s55, s{S_W}, 10')
    a(f's_add_u32 m0, s55, {L_XT}')
    a('s_add_u32 s55, s53, s54')
    a(f'buffer_load_dwordx4 v4, {srd(R_X)}, s55 offen lds')
    a('ds_write_b32 v13, v12')
    mk_srd(a, R_WO, 68, 512*512*2)
    mk_srd(a, R_W1, 72, 2048*1376*2)
    mk_srd(a, R_B1, 74, 1376*2)
    mk_srd(a, R_W2, 76, 1376*2048*2)
    mk_srd(a, R_B2, 78, 4096)
    mk_srd(a, R_OUT, 80, 2*MB)
    a(f's_mul_i32 s56, s{S_Q}, 3072')
    a(f's_add_u32 s56, s56, {L_WR}')
    def dma_chunk(c):
        slot = c % NSLOT
        return [f's_add_u32 m0, s56, {slot*SLOT}', f's_mov_b32 s57, {c*32*3072}',
                f'buffer_load_dwordx4 v9, {srd(R_WQ)}, s57 offen lds',
                f'buffer_load_dwordx4 v10, {srd(R_WQ)}, s57 offen offset:1024 lds',
                f'buffer_load_dwordx4 v9, {srd(R_WQ)}, s57 offen offset:2048 lds']
    def ln_code():
        st = []
        st += ['s_mov_b32 s58, 0x3f803f80', 'v_mov_b32 v16, 0', 'v_mov_b32 v17, 0', 'v_mov_b32 v18, 0', 'v_mov_b32 v19, 0']
        for i in range(0, 32, 2):
            st += [f'v_dot2c_f32_bf16 v16, s58, v{X+i}', f'v_dot2c_f32_bf16 v18, v{X+i}, v{X+i}',
                   f'v_dot2c_f32_bf16 v17, s58, v{X+i+1}', f'v_dot2c_f32_bf16 v19, v{X+i+1}, v{X+i+1}']
        st += ['v_add_f32 v16, v16, v17', 'v_add_f32 v18, v18, v19']
        for m in ('quad_perm:[1,0,3,2]', 'quad_perm:[2,3,0,1]', 'row_half_mirror'):
            st += [f'v_add_f32_dpp v16, v16, v16 {m} row_mask:0xf bank_mask:0xf', f'v_add_f32_dpp v18, v18, v18 {m} row_mask:0xf bank_mask:0xf']
        st += [f'v_mul_f32 v16, {hx(f32(1/512))}, v16', f'v_mul_f32 v18, {hx(f32(1/512))}, v18', 'v_fma_f32 v18, -v16, v16, v18',
               'v_max_f32 v18, 0, v18', f'v_add_f32 v18, {hx(f32(1e-5))}, v18', 'v_rsq_f32 v18, v18', 's_mov_b32 s59, 0xffff0000', 'v_mul_f32 v16, v16, v18']
        groups = []
        for i in range(8):
            gl = []
            for j in range(4):
                x = X + 4*i + j
                t0, t1 = (52, 53) if j % 2 == 0 else (54, 55)
                gl += [f'v_lshlrev_b32 v{t0}, 16, v{x}', f'v_and_b32 v{t1}, s59, v{x}', f'v_fma_f32 v{t0}, v{t0}, v18, -v16',
                       f'v_fma_f32 v{t1}, v{t1}, v18, -v16', f'v_cvt_pk_bf16_f32 v{x}, v{t0}, v{t1}']
            gl.append(f'ds_write_b128 v5, {vr(X+4*i,4)} offset:{128*i}')
            groups.append(gl)
        return st, groups
    def tag_code():
        a(f'v_readfirstlane_b32 s{S_TAG}, v15')
        a(f's_mul_i32 s{S_TAG}, s{S_TAG}, 0x41c64e6d')
        a(f's_add_u32 s{S_TAG}, s{S_TAG}, 0x3c6ef35f')
    a(f's_cmp_lt_u32 s{S_W}, 4')
    a('s_cbranch_scc1 L_compute')

    for x in dma_chunk(0): a(x)
    a('s_waitcnt vmcnt(4)')
    g.stamp(1)
    tag_code()
    st, groups = ln_code()
    half = len(st)//2
    for x in dma_chunk(1): a(x)
    for x in st[:half]: a(x)
    for x in dma_chunk(2): a(x)
    for x in st[half:]: a(x)
    for i, gl in enumerate(groups):
        if i % 2 == 0:
            for x in dma_chunk(3 + i//2): a(x)
        for x in gl: a(x)
    a('s_waitcnt lgkmcnt(0)')
    g.stamp(2)
    issued = NSLOT
    for i in range(16):
        a(f's_waitcnt vmcnt({3*(issued-1-i)})')
        a('s_barrier')
        if i >= 1 and issued < 16:
            for x in dma_chunk(issued): a(x)
            issued += 1
        if i == 10:
            a('v_bfe_u32 v4, v0, 3, 3')
            a('v_and_b32 v5, 7, v0')
            a('v_lshlrev_b32 v6, 1, v4')
            a('v_and_b32 v6, 4, v6')
            a('v_xor_b32 v6, v6, v5')
            a('v_lshlrev_b32 v6, 4, v6')
            a('v_lshl_add_u32 v6, v4, 10, v6')
            a(f's_lshl_b32 s58, s{S_Q}, 17')
            a('s_add_u32 s58, s58, s54')
            a('v_add_u32 v12, s58, v6')
            for k in range(1, 4): a(f'v_add_u32 v{12+k}, {7168*k}, v12')
            a('v_and_b32 v4, 63, v0')
            a(f's_mul_i32 s58, s{S_FT}, 96')
            for j in range(3):
                a(f'v_add_u32 v5, {64*j}, v4')
                a('v_mul_u32_u24 v6, 10923, v5')
                a('v_lshrrev_b32 v6, 16, v6')
                a('v_mul_u32_u24 v7, 6, v6')
                a('v_sub_u32 v7, v5, v7')
                a('v_mul_u32_u24 v6, 2752, v6')
                a('v_lshl_add_u32 v6, v7, 4, v6')
                a(f'v_add_u32 v6, s58, v6')
                if j: a(f'v_subrev_u32 v6, {1024*j}, v6')
                a(f'v_mov_b32 v{16+j}, v6')
    a('s_barrier')
    g.stamp(3)
    a(f's_lshl_b32 s58, s{S_Q}, 14')
    for c in range(4):
        a(f's_add_u32 m0, s58, {L_WO + c*4096}')
        a(f's_mov_b32 s57, {c*32768}')
        for k in range(4):
            a(f'buffer_load_dwordx4 v{12+k}, {srd(R_WO)}, s57 offen offset:{1024*k} lds')
    a('v_mov_b32 v8, v16'); a('v_mov_b32 v9, v17'); a('v_mov_b32 v10, v18')
    if OPT['fast']:
        a(f's_cmp_lg_u32 s{S_W}, 4')
        a('s_cbranch_scc1 L_nofx')
        a('v_and_b32 v4, 7, v0')
        a('v_lshlrev_b32 v4, 2, v4')
        a(f's_lshl_b32 s57, s{S_RB}, 7')
        a(f's_add_u32 s57, s57, {FL_X}')
        a(f's_lshr_b32 s59, s{S_TAG}, 4')
        a('L_fxp:')
        a(f'buffer_load_dword v5, v4, {srd(R_WS)}, s57 offen sc1')
        a('s_waitcnt vmcnt(0)')
        a('v_lshrrev_b32 v6, 4, v5')
        a('v_cmp_ne_u32 vcc, s59, v6')
        a('s_cmp_eq_u64 vcc, 0')
        a('s_cbranch_scc1 L_fxd')
        a(f's_sub_u32 s{S_TO}, s{S_TO}, 1')
        a('s_cbranch_scc0 L_fxp')
        a(f's_mov_b32 s{S_TO}, 0')
        a('L_fxd:')
        a('v_readfirstlane_b32 s59, v5')
        a('v_cmp_ne_u32 vcc, s59, v5')
        a('s_cmp_eq_u64 vcc, 0')
        a('s_cselect_b32 s59, 2, 1')
        a('v_mov_b32 v5, s59')
        a(f'ds_write_b32 v1, v5 offset:{SY_FAST}')
        a('L_nofx:')
    a('s_waitcnt vmcnt(0)')
    g.arrive(SY_WO)
    g.stamp(4)
    a(f's_cmp_ge_u32 s{S_FT}, 32')
    a('s_cbranch_scc1 L_hidle')
    DACC, DST, DRING = 12, 60, 204
    a(f's_mul_i32 s56, s{S_Q}, 12288')
    a(f's_add_u32 s56, s56, {L_W1S}')
    if OPT['drot']:
        a('s_lshr_b32 s60, s2, 3')
        a('s_lshr_b32 s61, s60, 2')
        a('s_and_b32 s60, s60, 3')
        a('s_lshl_b32 s60, s60, 1')
        a('s_add_u32 s60, s60, s61')
        a('s_lshl_b32 s60, s60, 1')
    else:
        a('s_mov_b32 s60, 0')
    a(f's_lshl_b32 s61, s{S_Q}, 4')
    def ks(i, dst, mul, add=None):
        l = [f's_add_u32 s{dst}, s60, {i}', f's_and_b32 s{dst}, s{dst}, 15', f's_add_u32 s{dst}, s{dst}, s61', f's_mul_i32 s{dst}, s{dst}, {mul}']
        if add: l.append(f's_add_u32 s{dst}, s{dst}, {add}')
        return l
    def w1dma(i):
        l = ks(i, 57, 32*2752) + [f's_add_u32 m0, s56, {(i%4)*3072}']
        for j in range(3): l.append(f'buffer_load_dwordx4 v{8+j}, {srd(R_W1)}, s57 offen offset:{1024*j} lds')
        return l
    a('v_bfe_u32 v4, v0, 2, 4')
    a('v_mul_u32_u24 v11, 96, v4')
    a('v_and_b32 v4, 3, v0')
    a('v_lshl_add_u32 v11, v4, 3, v11')
    a('v_add_u32 v11, s56, v11')
    def w1rd(i, dstslot):
        return [f'ds_read_b64_tr_b16 {vr(DST+12*dstslot+4*u+2*j,2)}, v11 offset:{(i%4)*3072+j*1536+u*32}' for u in range(3) for j in range(2)]
    for i in range(4):
        for x in w1dma(i): a(x)
    for i in range(12):
        a('s_waitcnt vmcnt(9)')
        for x in w1rd(i, i): a(x)
        a('s_waitcnt lgkmcnt(0)')
        for x in w1dma(i+4): a(x)
    a('v_and_b32 v4, 7, v0')
    a('v_lshlrev_b32 v4, 2, v4')
    a(f's_lshl_b32 s57, s{S_DB}, 9')
    a(f's_lshl_b32 s58, s{S_Q}, 7')
    a('s_add_u32 s57, s57, s58')
    a(f's_add_u32 s57, s57, {FL_H}')
    a(f's_lshl_b32 s62, s{S_DB}, 12')
    a(f's_add_u32 s62, s62, {WS_HF}')
    a('s_waitcnt vmcnt(0)')
    g.stamp(5)
    g.poll(4, 's57')
    g.stamp(6)
    a('s_setprio 2')
    def hld(i, t): return f'buffer_load_dwordx4 {vr(DRING+16*(i%3)+4*t,4)}, v2, {srd(R_WS)}, s57 offen offset:{1024*t} sc1'
    for i in range(3):
        for x in ks(i, 57, 32768, 's62'): a(x)
        for t in range(4): a(hld(i, t))
    BI = DST + 12*5
    a('v_bfe_u32 v4, v0, 4, 2')
    a('v_lshlrev_b32 v5, 3, v4')
    a(f's_mul_i32 s59, s{S_FT}, 96')
    nout = 12
    for i in range(16):
        slot = i if i < 12 else i - 12
        later = sum(4 for k in (i+1, i+2) if k < 16) + (3 if i in (14, 15) else 0)
        wl = ' lgkmcnt(0)' if i >= 12 else ''
        a(f's_waitcnt vmcnt({later}){wl}')
        if i == 0: g.stamp(7)
        if i + 3 < 16:
            for x in ks(i+3, 57, 32768, 's62'): a(x)
        for t in range(4):
            for u in range(3):
                acc = vr(DACC+12*t+4*u, 4); cin = '0' if i == 0 else acc
                a(f'v_mfma_f32_16x16x32_bf16 {acc}, {vr(DST+12*slot+4*u,4)}, {vr(DRING+16*(i%3)+4*t,4)}, {cin}')
            if i + 3 < 16: a(hld(i+3, t))
        if 1 <= i <= 4:
            for x in w1rd(12+i-1, i-1): a(x)
        if i == 12:
            g.arrive(SY_GO)
        if i == 13:
            for t in range(3):
                a(f'buffer_load_dwordx2 {vr(BI+2*t,2)}, v5, {srd(R_B1)}, s59 offen offset:{32*t}')
    g.stamp(8)
    a('v_add_u32 v6, s56, v2')
    a(f's_mul_i32 s57, s{S_Q}, 3072')
    a(f's_add_u32 s57, s57, {L_W1S}')
    a('v_add_u32 v7, s57, v2')
    for t in range(4):
        for u in range(3):
            a(f'ds_write_b128 v6, {vr(DACC+12*t+4*u,4)} offset:{t*3072+u*1024}')
    g.arrive(SY_RED)
    a('v_and_b32 v9, 15, v0')
    a('v_lshlrev_b32 v9, 4, v9')
    a('v_lshrrev_b32 v10, 1, v4')
    a('v_lshl_add_u32 v9, v10, 9, v9')
    a('v_and_b32 v10, 1, v4')
    a('v_lshl_add_u32 v9, v10, 3, v9')
    a(f's_mul_i32 s57, s{S_FT}, {3*16384}')
    a(f's_lshl_b32 s58, s{S_DB}, 11')
    a('s_add_u32 s57, s57, s58')
    a(f's_lshr_b32 s58, s{S_Q}, 1')
    a('s_lshl_b32 s58, s58, 10')
    a('s_add_u32 s57, s57, s58')
    a(f's_and_b32 s58, s{S_Q}, 1')
    a('s_lshl_b32 s58, s58, 8')
    a('s_add_u32 s57, s57, s58')
    a(f's_add_u32 s57, s57, {WS_UF}')
    c2 = -2*0.7978845608028654*LOG2E
    a(f's_mov_b32 s58, {hx(f32(c2*0.044715))}')
    a(f'v_mov_b32 v8, {hx(f32(c2))}')
    a('s_mov_b32 s59, 0xffff0000')
    a('s_waitcnt vmcnt(0)')
    U = DST; T = DST + 12; R = DRING
    for u in range(3):
        for h in range(2):
            a(f'v_lshlrev_b32 v{U+4*u+2*h}, 16, v{BI+2*u+h}')
            a(f'v_and_b32 v{U+4*u+2*h+1}, s59, v{BI+2*u+h}')
    g.wait(SY_RED, 4)
    for s in range(4):
        for u in range(3):
            a(f'ds_read_b128 {vr(R+12*s+4*u,4)}, v7 offset:{s*12288+u*1024}')
    for s in range(4):
        a(f's_waitcnt lgkmcnt({3*(3-s)})')
        for r in range(12): a(f'v_add_f32 v{U+r}, v{U+r}, v{R+12*s+r}')
    for r in range(12): a(f'v_mul_f32 v{T+r}, v{U+r}, v{U+r}')
    for r in range(12): a(f'v_fma_f32 v{T+r}, v{T+r}, s58, v8')
    for r in range(12): a(f'v_mul_f32 v{T+r}, v{T+r}, v{U+r}')
    for r in range(12): a(f'v_exp_f32 v{T+r}, v{T+r}')
    for r in range(12): a(f'v_add_f32 v{T+r}, 1.0, v{T+r}')
    for r in range(12): a(f'v_rcp_f32 v{T+r}, v{T+r}')
    for r in range(12): a(f'v_mul_f32 v{U+r}, v{U+r}, v{T+r}')
    for u in range(3):
        a(f'v_cvt_pk_bf16_f32 v{T+2*u}, v{U+4*u}, v{U+4*u+1}')
        a(f'v_cvt_pk_bf16_f32 v{T+2*u+1}, v{U+4*u+2}, v{U+4*u+3}')
        if u: a('s_add_u32 s57, s57, 16384')
        a(f'buffer_store_dwordx2 {vr(T+2*u,2)}, v9, {srd(R_WS)}, s57 offen sc1')
    g.stamp(9)
    a('s_waitcnt vmcnt(0)')
    g.arrive_last(SY_U, 'L_hdone')
    a(f's_lshl_b32 s57, s{S_DB}, 9')
    a(f's_lshr_b32 s58, s{S_FT}, 3')
    a('s_lshl_b32 s58, s58, 7')
    a('s_add_u32 s57, s57, s58')
    a(f's_and_b32 s58, s{S_FT}, 7')
    a('s_lshl_b32 s58, s58, 2')
    a('s_add_u32 s57, s57, s58')
    a(f's_add_u32 s57, s57, {FL_U}')
    a(f'v_mov_b32 v4, s{S_TAG}')
    a('v_mov_b32 v5, 0')
    a('s_mov_b64 exec, 1')
    a(f'buffer_store_dword v4, v5, {srd(R_WS)}, s57 offen sc1')
    a('s_mov_b64 exec, -1')
    a('s_branch L_hdone')
    a('L_hidle:')
    g.arrive(SY_GO)
    g.arrive(SY_U)
    a('L_hdone:')
    g.stamp_fin()
    a('s_endpgm')

    a('L_compute:')
    a('s_waitcnt vmcnt(1)')
    g.stamp(1)
    tag_code()
    if OPT['fast']:
        a(f's_cmp_lg_u32 s{S_W}, 0')
        a('s_cbranch_scc1 L_noxp')
        a('s_getreg_b32 s57, hwreg(HW_REG_XCC_ID, 0, 4)')
        a(f's_and_b32 s58, s{S_TAG}, 0xfffffff0')
        a('s_or_b32 s57, s57, s58')
        a('v_mov_b32 v14, s57')
        a(f's_lshl_b32 s57, s{S_RB}, 7')
        a(f's_lshl_b32 s58, s{S_HG}, 2')
        a('s_add_u32 s57, s57, s58')
        a(f's_add_u32 s57, s57, {FL_X}')
        a('s_mov_b64 exec, 1')
        a(f'buffer_store_dword v14, v12, {srd(R_WS)}, s57 offen sc1')
        a('s_mov_b64 exec, -1')
        a('L_noxp:')
    st, groups = ln_code()
    for x in st: a(x)
    for gl in groups:
        for x in gl: a(x)
    g.stamp(2)
    a('v_and_b32 v6, 31, v0')
    a('v_bfe_u32 v7, v0, 5, 1')
    a(f's_and_b32 s60, s{S_W}, 1')
    a(f's_lshr_b32 s61, s{S_W}, 1')
    a('s_lshl_b32 s57, s60, 5')
    a('v_add_u32 v4, s57, v6')
    a(f'v_mul_u32_u24 v4, {XROW}, v4')
    a('v_lshl_add_u32 v4, v7, 4, v4')
    a('s_xor_b32 s57, s57, 32')
    a('v_add_u32 v5, s57, v6')
    a(f'v_mul_u32_u24 v5, {XROW}, v5')
    a('v_lshl_add_u32 v5, v7, 4, v5')
    a('v_bfe_u32 v12, v0, 2, 2')
    a('v_mul_u32_u24 v13, 3072, v7')
    a('v_lshl_add_u32 v13, v12, 7, v13')
    a('v_and_b32 v14, 3, v0')
    a('v_lshl_add_u32 v13, v14, 3, v13')
    a(f'v_add_u32 v13, {L_WR}, v13')
    a('v_bfe_u32 v14, v0, 4, 1')
    a('v_and_b32 v12, 2, v12')
    a(f'v_xor_b32 v15, s{S_W}, v12')
    a('v_xor_b32 v15, v15, v14')
    a('v_lshl_add_u32 v8, v15, 5, v13')
    a('v_lshl_add_u32 v8, v14, 10, v8')
    a('s_lshl_b32 s57, s61, 1')
    a('v_add_u32 v15, s57, v14')
    a('v_xor_b32 v15, v15, v12')
    a('v_lshl_add_u32 v10, v15, 5, v13')
    a('v_add_u32 v10, 2048, v10')
    a(f'v_add_u32 v9, {4*SLOT}, v8')
    a(f'v_add_u32 v11, {4*SLOT}, v10')
    ACC = 140; SET = [188, 220]
    def reads(c):
        b = SET[c % 2]; slot = c % NSLOT
        hi = slot >= 4; so = (slot - 4*hi) * SLOT
        l = []
        for t in range(2):
            l.append(f'ds_read_b128 {vr(b+16*t,4)}, v4 offset:{(c*32+16*t)*2}')
            for j in range(2): l.append(f'ds_read_b64_tr_b16 {vr(b+16*t+8+2*j,2)}, v{8+hi} offset:{so+t*6144+j*512}')
            l.append(f'ds_read_b128 {vr(b+16*t+4,4)}, v5 offset:{(c*32+16*t)*2}')
            for j in range(2): l.append(f'ds_read_b64_tr_b16 {vr(b+16*t+12+2*j,2)}, v{10+hi} offset:{so+t*6144+j*512}')
        return l
    def mfmas(c):
        b = SET[c % 2]; l = []
        for t in range(2):
            z = (c == 0 and t == 0)
            xa, xb, wqk, wv = (vr(b+16*t+4*k, 4) for k in range(4))
            for acc, A, B in ((ACC, wqk, xa), (ACC+16, wqk, xb), (ACC+32, xa, wv)):
                l.append(f'v_mfma_f32_32x32x16_bf16 {vr(acc,16)}, {A}, {B}, {"0" if z else vr(acc,16)}')
        return l
    extra = [f'v_mov_b32 v{VB+i}, s58' for i in range(80)]
    for r in range(16):
        kr = (r & 3) + 8*(r >> 2); m = 0
        for l in range(64):
            if kr + 4*(l >> 5) <= (l & 31): m |= 1 << l
        extra.append(f's_mov_b32 s{S_MASK+2*r}, {hx(m)}'); extra.append(f's_mov_b32 s{S_MASK+2*r+1}, {hx(m >> 32)}')
    a('s_mov_b32 s58, 0x3f803f80')
    for i in range(16):
        a('s_waitcnt vmcnt(0) lgkmcnt(0)' if i == 8 else 's_waitcnt lgkmcnt(0)')
        a('s_barrier')
        if i == 0: g.stamp(3)
        r = reads(i); m = mfmas(i-1) if i else []
        ex = extra[:8] if i else []; extra = extra[len(ex):]
        interleave(a, m, r + ex, [4, 4, 4, 3, 3, 3])
    assert not extra
    a('s_waitcnt lgkmcnt(0)')
    a('s_barrier')
    for x in mfmas(15): a(x)
    g.stamp(4)
    a(f's_lshl_b32 s62, s{S_RB}, 3')
    a(f's_add_u32 s62, s62, s{S_HG}')
    a('s_lshl_b32 s63, s62, 14')
    a(f's_lshl_b32 s57, s{S_W}, 12')
    a('s_add_u32 s57, s57, s63')
    a('s_lshl_b32 s58, s60, 11')
    a('s_add_u32 s59, s57, s58')
    a('s_xor_b32 s58, s58, 2048')
    a('s_add_u32 s58, s57, s58')
    a('v_and_b32 v4, 15, v0')
    a('v_lshlrev_b32 v4, 4, v4')
    a('v_lshl_add_u32 v4, v7, 8, v4')
    a('v_lshl_add_u32 v5, v14, 12, v4')
    a('v_lshl_add_u32 v8, v14, 11, v4')
    a('s_lshl_b32 s50, s61, 13')
    a('s_lshl_b32 s51, s60, 11')
    a('s_add_u32 s50, s50, s51')
    a('s_add_u32 s50, s50, s63')
    a('s_lshl_b32 s51, s61, 12')
    a('s_lshl_b32 s52, s60, 10')
    a('s_add_u32 s51, s51, s52')
    a(f's_add_u32 s51, s51, {L_XCH}')
    a('v_add_u32 v8, s51, v8')
    Ka, Kb_ = KB+32, KB+36
    for r in range(4): a(f'v_cvt_pk_bf16_f32 v{Ka+r}, v{ACC+8+2*r}, v{ACC+9+2*r}')
    a(f'buffer_store_dwordx4 {vr(Ka,4)}, v2, {srd(R_WS)}, s59 offen sc1')
    for r in range(4): a(f'v_cvt_pk_bf16_f32 v{Kb_+r}, v{ACC+24+2*r}, v{ACC+25+2*r}')
    a(f'buffer_store_dwordx4 {vr(Kb_,4)}, v2, {srd(R_WS)}, s58 offen sc1')
    for r in range(8): a(f'v_cvt_pk_bf16_f32 v{PB+r}, v{ACC+32+2*r}, v{ACC+33+2*r}')
    a(f'buffer_store_dwordx4 {vr(PB,4)}, v5, {srd(R_WS)}, s50 offen offset:1024 sc1')
    a(f'buffer_store_dwordx4 {vr(PB+4,4)}, v5, {srd(R_WS)}, s50 offen offset:1536 sc1')
    a(f'ds_write_b128 v8, {vr(PB,4)}')
    a(f'ds_write_b128 v8, {vr(PB+4,4)} offset:512')
    g.arrive(SY_V)
    a(f's_mov_b32 s57, {hx(f32(0.25*LOG2E))}')
    for base, q in ((ACC, Q0), (ACC+16, Q1)):
        for r in range(8): a(f'v_mul_f32 v{base+r}, s57, v{base+r}')
        for r in range(4): a(f'v_cvt_pk_bf16_f32 v{q+r}, v{base+2*r}, v{base+2*r+1}')
    a('s_cmp_eq_u32 s60, 0')
    a('s_cbranch_scc1 L_noswap')
    for r in range(4):
        a(f'v_swap_b32 v{Q0+r}, v{Q1+r}')
        a(f'v_swap_b32 v{Ka+r}, v{Kb_+r}')
    a('s_nop 1')
    a('L_noswap:')
    a('v_mov_b32 v10, 0xff800000')
    a('v_mov_b32 v11, 0')
    Qs = [Q0, Q1]; NM = [NM0, NM1]; Os = [O0, O1]; Ss = [S0, S1]
    def mk(r): return f's[{S_MASK+2*r}:{S_MASK+2*r+1}]'
    def init_mask(s, valreg, diag):
        if diag: return [f'v_cndmask_b32 v{s+r}, v10, v{valreg}, {mk(r)}' for r in range(16)]
        return [f'v_cndmask_b32 v{s+r}, v{valreg}, v10, {mk(r)}' for r in range(16)]
    def qk(u, b, s, cin): return f'v_mfma_f32_32x32x16_bf16 {vr(s,16)}, {vr(KB+4*b,4)}, {vr(Qs[u],4)}, {cin}'
    def rowmax(m, s, first):
        l = []
        if first: l.append(f'v_max_f32 v{m}, v{s}, v{s+1}')
        for r in range(2 if first else 0, 16, 2): l.append(f'v_max3_f32 v{m}, v{s+r}, v{s+r+1}, v{m}')
        return l
    def xhalf_neg(m, u):
        l = [f'v_mov_b32 v9, v{m}', f'v_permlane32_swap_b32 v{m}, v9', f'v_max_f32 v{m}, v{m}, v9']
        l += [f'v_sub_f32 v{NM[u]+r}, 0, v{m}' for r in range(16)]
        return l
    for u in range(2):
        for x in init_mask(Ss[u], 11, True): a(x)
        a(qk(u, 8+u, Ss[u], vr(Ss[u], 16)))
    for u in range(2):
        for x in rowmax(6+u, Ss[u], True): a(x)
    for u in range(2):
        for x in xhalf_neg(6+u, u): a(x)
    a('s_waitcnt vmcnt(0)')
    g.arrive_last(SY_KV, 'L_nokvf')
    a('v_and_b32 v8, 63, v0')
    a('v_mul_u32_u24 v9, 1028, v8')
    a(f'v_add_u32 v8, s{S_RB}, v8')
    a('v_cmp_gt_u32 vcc, 31, v8')
    a('s_lshl_b32 s57, s62, 7')
    a(f's_add_u32 s57, s57, {FL_KV + 1024}')
    a(f'v_mov_b32 v8, s{S_TAG}')
    a('s_and_b64 exec, vcc, 15')
    a('s_cbranch_execz L_nokvf2')
    a(f'buffer_store_dword v8, v9, {srd(R_WS)}, s57 offen sc1')
    a('L_nokvf2:')
    a('s_mov_b64 exec, -1')
    a('L_nokvf:')
    g.stamp(5)
    g.wait(SY_V, 4)
    a(f's_lshl_b32 s57, s{S_W}, 11')
    a(f's_add_u32 s57, s57, {L_XCH}')
    a('v_add_u32 v8, s57, v4')
    a('s_mov_b32 exec_lo, 0xffff'); a('s_mov_b32 exec_hi, 0xffff')
    for k in range(4): a(f'ds_read_b128 {vr(VB+64+4*k,4)}, v8 offset:{512*k}')
    a('s_mov_b64 exec, -1')
    a('s_mov_b32 s49, 0')
    a('s_waitcnt lgkmcnt(0)')
    a('L_redo:')
    items = [(0, 8, 'd'), (1, 9, 'd'), (1, 8, '')]
    for b in range(7, 0, -1): items += [(0, b, ''), (1, b, 'f' if b == 1 else '')]
    items.append((0, 0, 'f'))
    def qk_item(i):
        u, b, mt = items[i]; s = Ss[i % 2]
        if mt: return init_mask(s, NM[u], mt == 'd') + [qk(u, b, s, vr(s, 16))]
        return [qk(u, b, s, vr(NM[u], 16))]
    seen = set()
    pend = []
    for x in qk_item(0): a(x)
    def halo_waits(i):
        pass
    for i, (u, b, mt) in enumerate(items):
        s = Ss[i % 2]; P = PB + 8*(i % 2)
        if i == 2:
            pass
        nxt = []
        if i + 1 < len(items) and i != 2:
            u2, b2, _ = items[i+1]
            if b2 < 8 and u2 == 0 and b2 % 2 == 1:
                p = (7 - b2) // 2
                nxt.append(f's_waitcnt vmcnt({6*(3-p)+4})')
            nxt += qk_item(i+1)
        body = []
        for gi in range(2):
            body += [f'v_exp_f32 v{s+r}, v{s+r}' for r in range(8*gi, 8*gi+8)]
            body += [f'v_cvt_pk_bf16_f32 v{P+r}, v{s+2*r}, v{s+2*r+1}' for r in range(4*gi, 4*gi+4)]
            cin = '0' if (u not in seen and gi == 0) else vr(Os[u], 16)
            pv = f'v_mfma_f32_32x32x16_bf16 {vr(Os[u],16)}, {vr(VB+8*b+4*gi,4)}, {vr(P+4*gi,4)}, {cin}'
            w = None
            if b < 8 and u == 0 and gi == 0:
                p = (7 - b) // 2
                w = f's_waitcnt vmcnt({6*(3-p) + (2 if b % 2 == 1 else 0)})'
            body.append(('pv', w, pv))
        seen.add(u)
        out = []
        cnt = 0
        for x in body:
            if isinstance(x, tuple):
                pend = [y for y in x[1:] if y]; cnt = 0; continue
            out.append(x); cnt += 1
            if cnt == 2 and pend:
                out += pend; pend = []
            if len(out) >= 3 and nxt and not pend:
                out += nxt; nxt = []
        for x in out: a(x)
        assert not nxt
        boundary = (i == 2) or (u == 1 and b in (6, 4, 2)) or i == len(items) - 1
        if boundary:
            for x in pend: a(x)
            pend = []
        if i == 2:
            g.stamp(6)
            a(f's_cmp_eq_u32 s{S_RB}, 0')
            a('s_cbranch_scc1 L_bdone')
            a('s_cmp_lg_u32 s49, 0')
            a('s_cbranch_scc1 L_noload')
            a(f's_min_u32 s57, s{S_RB}, 4')
            a('s_sub_u32 s57, s57, 1')
            a('v_and_b32 v8, 63, v0')
            a('v_min_u32 v8, s57, v8')
            a('v_lshlrev_b32 v8, 2, v8')
            a('s_lshl_b32 s57, s62, 7')
            a(f's_add_u32 s57, s57, {FL_KV}')
            g.poll(8, 's57')
            g.stamp(7)
            a(f's_lshl_b32 s57, s{S_W}, 12')
            a('s_add_u32 s57, s57, s63')
            for p in range(4):
                a('s_sub_u32 s57, s57, 131072')
                a('s_cselect_b32 s57, 0, s57')
                bh, bl = 7 - 2*p, 6 - 2*p
                a(f'buffer_load_dwordx4 {vr(KB+4*bh,4)}, v2, {srd(R_WS)}, s57 offen offset:2048 sc1')
                a(f'buffer_load_dwordx4 {vr(KB+4*bl,4)}, v2, {srd(R_WS)}, s57 offen sc1')
                a('s_mov_b32 exec_lo, 0xffff'); a('s_mov_b32 exec_hi, 0xffff')
                for bb, o in ((bh, 3072), (bl, 1024)):
                    for gi in range(2):
                        a(f'buffer_load_dwordx4 {vr(VB+8*bb+4*gi,4)}, v4, {srd(R_WS)}, s57 offen offset:{o+512*gi} sc1')
                a('s_mov_b64 exec, -1')
            a('L_noload:')
            a('s_waitcnt vmcnt(22)')
            g.stamp(8)
            for x in qk_item(3): a(x)
        elif u == 1 and b in (6, 4, 2):
            a(f's_cmp_eq_u32 s{S_RB}, {(8-b)//2}')
            a('s_cbranch_scc1 L_bdone')
    a('L_bdone:')
    a('s_nop 7'); a('s_nop 3')
    g.stamp(9)
    a(f'v_mov_b32 v8, {hx(f32(2.0**30))}')
    a(f'v_cmp_nle_f32 vcc, v{O0+8}, v8')
    a(f'v_cmp_nle_f32 s[50:51], v{O1+8}, v8')
    a('s_or_b64 vcc, vcc, s[50:51]')
    a('s_cmp_eq_u64 vcc, 0')
    a('s_cbranch_scc0 L_fallback')
    a('L_bok:')
    a(f'v_rcp_f32 v8, v{O0+8}')
    a(f'v_rcp_f32 v9, v{O1+8}')
    a(f's_lshl_b32 s57, s{S_HG}, 2')
    a(f's_add_u32 s57, s57, s{S_W}')
    a('s_lshl_b32 s57, s57, 10')
    a(f's_lshl_b32 s53, s{S_RB}, 16')
    a('s_add_u32 s57, s57, s53')
    a(f's_add_u32 s57, s57, {WS_OF}')
    a('s_add_u32 s58, s57, 32768')
    for u in range(2):
        for r in range(8): a(f'v_mul_f32 v{Os[u]+r}, v{Os[u]+r}, v{8+u}')
        for r in range(4): a(f'v_cvt_pk_bf16_f32 v{PB+4*u+r}, v{Os[u]+2*r}, v{Os[u]+2*r+1}')
    if OPT['fast']:
        g.wait(SY_FAST, 1)
        a(f's_lshr_b32 s{S_FAST}, s48, 1')
    a('s_waitcnt vmcnt(0)')
    g.store_fs([f'buffer_store_dwordx4 {vr(PB,4)}, v2, {srd(R_WS)}, s57 offen', f'buffer_store_dwordx4 {vr(PB+4,4)}, v2, {srd(R_WS)}, s58 offen'])
    AO, AT, CW, CO = 12, 28, 44, 172
    a('v_and_b32 v6, 31, v0')
    a('v_bfe_u32 v7, v0, 5, 1')
    a('v_lshlrev_b32 v8, 1, v6')
    a(f's_lshl_b32 s57, s{S_RB}, 7')
    a('s_lshl_b32 s58, s60, 6')
    a('s_add_u32 s57, s57, s58')
    a(f'buffer_load_ushort v252, v8, {srd(R_B2)}, s57 offen')
    a('v_lshlrev_b32 v8, 7, v6')
    a('v_lshl_add_u32 v8, v7, 3, v8')
    a('s_lshl_b32 s57, s60, 12')
    a('s_lshl_b32 s58, s61, 6')
    a('s_add_u32 s57, s57, s58')
    a(f's_add_u32 s57, s57, {L_XT}')
    a('v_add_u32 v8, s57, v8')
    for q in range(4): a(f'ds_read_b64 {vr(AT+2*q,2)}, v8 offset:{16*q}')
    a('v_bfe_u32 v9, v0, 2, 2')
    a('v_lshlrev_b32 v10, 9, v7')
    a('v_lshl_add_u32 v10, v9, 7, v10')
    a('v_bfe_u32 v11, v0, 4, 1')
    a('v_lshl_add_u32 v10, v11, 5, v10')
    a('v_and_b32 v11, 3, v0')
    a('v_lshl_add_u32 v10, v11, 3, v10')
    a('v_lshrrev_b32 v9, 1, v9')
    a('v_xor_b32 v11, s61, v9')
    a('v_lshl_add_u32 v4, v11, 6, v10')
    a('s_lshl_b32 s57, s61, 15')
    a('v_add_u32 v4, s57, v4')
    a('v_xor_b32 v5, 64, v4')
    a('s_mov_b32 s59, 0xffff0000')
    a('s_waitcnt lgkmcnt(0)')
    for q in range(8):
        a(f'v_lshlrev_b32 v{AO+2*q}, 16, v{AT+q}')
        a(f'v_and_b32 v{AO+2*q+1}, s59, v{AT+q}')
    a('s_waitcnt vmcnt(0)')
    g.arrive_last(SY_O, 'L_noof')
    a(f's_lshl_b32 s57, s{S_RB}, 7')
    a(f's_lshl_b32 s58, s{S_HG}, 2')
    a('s_add_u32 s57, s57, s58')
    a(f's_add_u32 s57, s57, {FL_O}')
    a(f'v_mov_b32 v8, s{S_TAG}')
    a('v_mov_b32 v3, 0')
    a('s_mov_b64 exec, 1')
    g.store_fs([f'buffer_store_dword v8, v3, {srd(R_WS)}, s57 offen'])
    a('s_mov_b64 exec, -1')
    a('L_noof:')
    g.stamp(10)
    g.wait(SY_WO, 4)
    for h in range(16):
        for hv, ad in ((0, 4), (1, 5)):
            for j in range(2):
                a(f'ds_read_b64_tr_b16 {vr(CW+8*h+4*hv+2*j,2)}, v{ad} offset:{h*2048+j*1024}')
    a('v_and_b32 v8, 3, v0')
    a('v_lshlrev_b32 v8, 2, v8')
    a(f's_lshl_b32 s57, s{S_RB}, 7')
    a('s_lshl_b32 s58, s61, 4')
    a('s_add_u32 s57, s57, s58')
    a(f's_add_u32 s57, s57, {FL_O}')
    a('s_lshl_b32 s58, s60, 15')
    a('s_lshl_b32 s50, s61, 14')
    a('s_add_u32 s58, s58, s50')
    a('s_add_u32 s58, s58, s53')
    a(f's_add_u32 s58, s58, {WS_OF}')
    g.poll(8, 's57')
    g.stamp(11)
    for h in range(16):
        if h and h % 4 == 0: a('s_add_u32 s58, s58, 4096')
        a(f'buffer_load_dwordx4 {vr(CO+4*h,4)}, v2, {srd(R_WS)}, s58 offen offset:{1024*(h%4)} sc1')
    a(f's_lshl_b32 s57, s{S_W}, 13')
    a(f's_add_u32 s57, s57, {L_XCH}')
    a('v_add_u32 v4, s57, v2')
    a('v_xor_b32 v5, 16384, v4') if (L_XCH % 32768) == 0 else None
    if L_XCH % 32768:
        a(f's_xor_b32 s58, s{S_W}, 2')
        a('s_lshl_b32 s58, s58, 13')
        a(f's_add_u32 s58, s58, {L_XCH}')
        a('v_add_u32 v5, s58, v2')
    a(f's_lshl_b32 s58, s{S_W}, 2')
    a('v_add_u32 v8, s58, v1')
    a('v_xor_b32 v9, 8, v8') if ((L_SY + SY_X0) % 16) == 0 else None
    if (L_SY + SY_X0) % 16:
        a('s_xor_b32 s58, s58, 8')
        a('v_add_u32 v9, s58, v1')
    g.wait(SY_O, 4)
    for h in range(16):
        a(f's_waitcnt vmcnt({15-h})')
        a(f'v_mfma_f32_32x32x16_bf16 {vr(AO,16)}, {vr(CW+8*h,4)}, {vr(CO+4*h,4)}, {vr(AO,16)}')
        a(f'v_mfma_f32_32x32x16_bf16 {vr(AT,16)}, {vr(CW+8*h+4,4)}, {vr(CO+4*h,4)}, {"0" if h == 0 else vr(AT,16)}')
    g.stamp(12)
    for k in range(8): a(f'ds_write_b128 v4, {vr(AO+4*k,4)} offset:{1024*k}')
    a('v_mov_b32 v3, 1')
    a(f'ds_write_b32 v8, v3 offset:{SY_X0}')
    XR = 44
    L = a.label('xw')
    a(f'{L}:')
    a(f'ds_read_b32 v3, v9 offset:{SY_X0}')
    for k in range(8): a(f'ds_read_b128 {vr(XR+4*k,4)}, v5 offset:{1024*k}')
    a('s_waitcnt lgkmcnt(0)')
    a('v_readfirstlane_b32 s48, v3')
    a('s_cmp_eq_u32 s48, 0')
    g.retry(L)
    for r in range(16):
        a(f'v_add_f32 v{AO+r}, v{AO+r}, v{XR+16+r}')
        a(f'v_add_f32 v{AT+r}, v{AT+r}, v{XR+r}')
    a(f'v_add_f32 v76, v{AO}, v{AT}')
    a(f'v_mul_f32 v78, v{AO}, v{AO}')
    a(f'v_mul_f32 v80, v{AT}, v{AT}')
    a(f'v_add_f32 v81, v{AO+1}, v{AT+1}')
    for r in range(1, 16):
        a(f'v_fmac_f32 v78, v{AO+r}, v{AO+r}')
        a(f'v_fmac_f32 v80, v{AT+r}, v{AT+r}')
        if r > 1:
            a(f'v_add_f32 v76, v76, v{AO+r}')
            a(f'v_add_f32 v81, v81, v{AT+r}')
    a('v_add_f32 v76, v76, v81')
    a('v_add_f32 v78, v78, v80')
    a('v_mov_b32 v80, v76'); a('v_mov_b32 v81, v78')
    a(f'v_mov_b32 v77, s{S_TAG}'); a(f'v_mov_b32 v79, s{S_TAG}')
    a('v_permlane32_swap_b32 v76, v80')
    a('v_permlane32_swap_b32 v78, v81')
    a('v_add_f32 v76, v76, v80')
    a('v_add_f32 v78, v78, v81')
    a(f's_lshl_b32 s57, s{S_RB}, 13')
    a('s_lshl_b32 s58, s60, 12')
    a('s_add_u32 s57, s57, s58')
    a(f's_add_u32 s57, s57, {WS_XS}')
    a('s_cmp_lg_u32 s61, 0')
    a('s_cbranch_scc1 L_nogr')
    a(f's_lshl_b32 s58, s{S_HG}, 9')
    a('s_add_u32 s58, s58, s57')
    a('s_mov_b32 exec_hi, 0')
    g.store_fs([f'buffer_store_dwordx4 v[76:79], v2, {srd(R_WS)}, s58 offen'])
    a('s_mov_b64 exec, -1')
    a('L_nogr:')
    g.stamp(13)
    TS = L_XT
    RS = 64
    a(f's_lshl_b32 s58, s{S_W}, 11')
    a(f's_add_u32 s58, s58, {TS}')
    a('v_lshlrev_b32 v4, 6, v6')
    a('v_lshl_add_u32 v4, v7, 3, v4')
    a('v_add_u32 v4, s58, v4')
    a('v_bfe_u32 v5, v0, 2, 4')
    a('v_lshlrev_b32 v5, 6, v5')
    a('v_and_b32 v8, 3, v0')
    a('v_lshl_add_u32 v5, v8, 3, v5')
    a('v_add_u32 v5, s58, v5')
    a('s_lshl_b32 s50, s60, 15')
    a('s_add_u32 s50, s50, s53')
    a(f's_lshl_b32 s51, s{S_HG}, 12')
    a('s_add_u32 s50, s50, s51')
    a('s_lshl_b32 s51, s61, 11')
    a('s_add_u32 s50, s50, s51')
    a(f's_add_u32 s50, s50, {WS_HF}')
    GR = 84
    Lp = a.label('gp'); Ld = a.label('gd')
    a(f'{Lp}:')
    for k in range(4): a(f'buffer_load_dwordx4 {vr(GR+4*k,4)}, v2, {srd(R_WS)}, s57 offen offset:{1024*k} sc1')
    a('s_waitcnt vmcnt(0)')
    a(f'v_xor_b32 v8, s{S_TAG}, v{GR+1}')
    for k in range(1, 8):
        a(f'v_xor_b32 v9, s{S_TAG}, v{GR+1+2*k}')
        a('v_or_b32 v8, v8, v9')
    a('v_cmp_ne_u32 vcc, 0, v8')
    a('s_cmp_eq_u64 vcc, 0')
    a(f's_cbranch_scc1 {Ld}')
    a(f's_sub_u32 s{S_TO}, s{S_TO}, 1')
    a(f's_cbranch_scc0 {Lp}')
    a(f's_mov_b32 s{S_TO}, 0')
    a(f'{Ld}:')
    g.stamp(14)
    a(f'v_add_f32 v76, v{GR}, v{GR+4}'); a(f'v_add_f32 v78, v{GR+2}, v{GR+6}')
    a(f'v_add_f32 v80, v{GR+8}, v{GR+12}'); a(f'v_add_f32 v81, v{GR+10}, v{GR+14}')
    a('v_add_f32 v76, v76, v80'); a('v_add_f32 v78, v78, v81')
    a('v_mov_b32 v80, v76'); a('v_mov_b32 v81, v78')
    a('v_permlane32_swap_b32 v76, v80')
    a('v_permlane32_swap_b32 v78, v81')
    a('v_add_f32 v76, v76, v80'); a('v_add_f32 v78, v78, v81')
    a(f's_mov_b32 s57, {hx(f32(1/512))}')
    a(f's_mov_b32 s58, {hx(f32(1e-5))}')
    a('v_mul_f32 v76, s57, v76')
    a('v_mul_f32 v78, s57, v78')
    a('v_fma_f32 v78, -v76, v76, v78')
    a('v_max_f32 v78, 0, v78')
    a('v_add_f32 v80, s58, v78')
    a('v_rsq_f32 v80, v80')
    a('v_mul_f32 v81, v80, v80')
    a('v_fma_f32 v81, v81, v78, s58')
    a('v_rsq_f32 v81, v81')
    a('v_mul_f32 v80, v80, v81')
    a('v_mul_f32 v76, v76, v80')
    for q in range(4):
        for r in range(4): a(f'v_fma_f32 v{AT+4*q+r}, v{AO+4*q+r}, v80, -v76')
        a(f'v_cvt_pk_bf16_f32 v{GR+2*q}, v{AT+4*q}, v{AT+4*q+1}')
        a(f'v_cvt_pk_bf16_f32 v{GR+2*q+1}, v{AT+4*q+2}, v{AT+4*q+3}')
        a(f'ds_write_b64 v4, {vr(GR+2*q,2)} offset:{16*q}')
    for db in range(2):
        for j in range(2):
            a(f'ds_read_b64_tr_b16 {vr(GR+8+4*db+2*j,2)}, v5 offset:{db*32+j*1024}')
    a('v_lshlrev_b32 v252, 16, v252')
    a('s_waitcnt lgkmcnt(0)')
    a(f'buffer_store_dwordx4 {vr(GR+8,4)}, v2, {srd(R_WS)}, s50 offen sc1')
    a(f'buffer_store_dwordx4 {vr(GR+12,4)}, v2, {srd(R_WS)}, s50 offen offset:1024 sc1')
    for r in range(16): a(f'v_add_f32 v{AO+r}, v{AO+r}, v252')
    a('v_bfe_u32 v4, v0, 3, 3')
    a('v_and_b32 v5, 7, v0')
    a('v_lshlrev_b32 v8, 1, v4')
    a('v_and_b32 v8, 4, v8')
    a('v_xor_b32 v8, v8, v5')
    a('v_lshlrev_b32 v8, 4, v8')
    a('v_lshl_add_u32 v8, v4, 12, v8')
    a('s_lshl_b32 s57, s61, 15')
    a(f's_lshl_b32 s58, s{S_RB}, 7')
    a('s_add_u32 s57, s57, s58')
    a('v_add_u32 v8, s57, v8')
    a('v_lshl_add_u32 v10, v7, 9, v10')
    a('v_bfe_u32 v9, v0, 3, 1')
    a('v_xor_b32 v9, s60, v9')
    a('v_lshl_add_u32 v10, v9, 6, v10')
    a('s_lshl_b32 s57, s60, 15')
    a('v_add_u32 v4, s57, v10')
    a('v_xor_b32 v5, 64, v4')
    a(f's_mul_i32 s57, s60, {11*2048}')
    a(f's_add_u32 s57, s57, {L_RB}')
    a('v_add_u32 v10, s57, v10')
    a('v_xor_b32 v11, 64, v10')
    a('s_waitcnt vmcnt(0)')
    g.arrive_last(SY_H, 'L_nohf')
    a(f's_lshl_b32 s57, s{S_HG}, 9')
    a(f's_lshr_b32 s58, s{S_RB}, 3')
    a('s_lshl_b32 s58, s58, 7')
    a('s_add_u32 s57, s57, s58')
    a(f's_and_b32 s58, s{S_RB}, 7')
    a('s_lshl_b32 s58, s58, 2')
    a('s_add_u32 s57, s57, s58')
    a(f's_add_u32 s57, s57, {FL_H}')
    a(f'v_mov_b32 v9, s{S_TAG}')
    a('v_mov_b32 v3, 0')
    a('s_mov_b64 exec, 1')
    a(f'buffer_store_dword v9, v3, {srd(R_WS)}, s57 offen sc1')
    a('s_mov_b64 exec, -1')
    a('L_nohf:')
    g.stamp(15)
    g.wait(SY_H, 4)
    if OPT['w2go'] == 'late': g.wait(SY_GO, 4, sleep=True)
    ES, ER = 44, 172
    def w2loop(first, n, ldsbase_s):
        L = a.label('w2')
        a(f's_mul_i32 s57, s60, {43*65536}')
        if first: a(f's_add_u32 s57, s57, {first*65536}')
        a(f's_mov_b32 m0, s{ldsbase_s}')
        a(f's_mov_b32 s58, {n}')
        a(f'{L}:')
        a(f'buffer_load_dwordx4 v8, {srd(R_W2)}, s57 offen lds')
        a('s_add_u32 m0, m0, 2048')
        a('s_add_u32 s57, s57, 65536')
        a('s_sub_u32 s58, s58, 1')
        a('s_cmp_lg_u32 s58, 0')
        a(f's_cbranch_scc1 {L}')
    a('s_lshl_b32 s50, s60, 15')
    a('s_lshl_b32 s51, s61, 10')
    a('s_add_u32 s50, s50, s51')
    a(f's_mul_i32 s52, s60, {11*2048}')
    a('s_add_u32 s52, s52, s51')
    a(f's_add_u32 s52, s52, {L_RB}')
    a('s_lshl_b32 s59, s60, 2')
    a('v_add_u32 v9, s59, v1')
    w2loop(0, 16, 50)
    w2loop(32, 11, 52)
    a('s_waitcnt vmcnt(11)')
    a(f'v_add_u32 v253, {SY_S0}, v9'); g.arrive_dyn(253)
    g.wait(SY_S0, 2, addr=9)
    def w2rd(dst, ro, rt, off):
        return [f'ds_read_b64_tr_b16 {vr(dst+4*hv+2*j,2)}, v{ad} offset:{off+j*512}' for hv, ad in ((0, ro), (1, rt)) for j in range(2)]
    for i in range(16):
        for x in w2rd(ES+8*i, 4, 5, i*2048): a(x)
    a('s_waitcnt lgkmcnt(0)')
    a(f'v_add_u32 v253, {SY_T0}, v9'); g.arrive_dyn(253)
    g.wait(SY_T0, 2, addr=9)
    if OPT['w2go'] == 'mid': g.wait(SY_GO, 4, sleep=True)
    w2loop(16, 16, 50)
    a('v_and_b32 v3, 63, v0')
    a('v_min_u32 v3, 14, v3')
    a('s_mul_i32 s57, s60, 14')
    a('v_add_u32 v3, s57, v3')
    a('v_lshrrev_b32 v253, 3, v3')
    a('v_lshlrev_b32 v253, 7, v253')
    a('v_and_b32 v3, 7, v3')
    a('v_lshl_add_u32 v254, v3, 2, v253')
    a(f's_lshl_b32 s51, s{S_HG}, 9')
    a(f's_add_u32 s51, s51, {FL_U}')
    a(f's_mul_i32 s58, s60, {43*16384}')
    a(f's_lshl_b32 s57, s{S_HG}, 11')
    a('s_add_u32 s58, s58, s57')
    a('s_lshl_b32 s57, s61, 10')
    a('s_add_u32 s58, s58, s57')
    a(f's_add_u32 s58, s58, {WS_UF}')
    a('s_waitcnt vmcnt(0)')
    a(f'v_add_u32 v253, {SY_R0}, v9'); g.arrive_dyn(253)
    g.wait(SY_R0, 2, addr=9)
    g.stamp(16)
    g.poll(254, 's51')
    g.stamp(17)
    NR = 16
    def uld(i): return [f'buffer_load_dwordx4 {vr(ER+4*(i%NR),4)}, v2, {srd(R_WS)}, s58 offen sc1', 's_add_u32 s58, s58, 16384']
    for i in range(NR):
        for x in uld(i): a(x)
    a(f's_or_b32 s57, s2, s{S_W}')
    def wreg(i): return ES + 8*(i % 16)
    def wrd(i):
        if i < 32: return w2rd(wreg(i), 4, 5, (i-16)*2048)
        return w2rd(wreg(i), 10, 11, (i-32)*2048)
    LA = 14
    for i in range(43):
        later = min(42, i + NR - 1) - i
        lg = ''
        if i >= 16:
            ahead = min(42, i + LA - 1) - i
            lg = f' lgkmcnt({min(15, 4*ahead)})'
        a(f's_waitcnt vmcnt({later}){lg}')
        if i == 0: g.stamp(18)
        uf = vr(ER+4*(i % NR), 4)
        a(f'v_mfma_f32_32x32x16_bf16 {vr(AO,16)}, {uf}, {vr(wreg(i),4)}, {vr(AO,16)}')
        if 16 <= i + LA <= 42:
            for x in wrd(i+LA): a(x)
        a(f'v_mfma_f32_32x32x16_bf16 {vr(AT,16)}, {uf}, {vr(wreg(i)+4,4)}, {"0" if i == 0 else vr(AT,16)}')
        if i + NR <= 42:
            for x in uld(i+NR): a(x)
    g.stamp(19)
    a(f's_lshl_b32 s50, s{S_W}, 12')
    a(f's_add_u32 s50, s50, {L_W1S}')
    a('v_add_u32 v4, s50, v2')
    a('v_xor_b32 v5, 4096, v4')
    a(f's_lshl_b32 s50, s{S_W}, 2')
    a('v_add_u32 v8, s50, v1')
    a('s_xor_b32 s50, s50, 4')
    a('v_add_u32 v9, s50, v1')
    g.wait(SY_U, 4)
    for k in range(4): a(f'ds_write_b128 v4, {vr(AT+4*k,4)} offset:{1024*k}')
    a('v_mov_b32 v3, 1')
    a(f'ds_write_b32 v8, v3 offset:{SY_E0}')
    a('v_lshlrev_b32 v10, 10, v6')
    a('v_lshl_add_u32 v10, v7, 4, v10')
    a('s_lshl_b32 s50, s60, 15')
    a('s_add_u32 s50, s50, s53')
    a(f's_lshl_b32 s51, s{S_HG}, 7')
    a('s_add_u32 s50, s50, s51')
    a('s_lshl_b32 s51, s61, 6')
    a('s_add_u32 s50, s50, s51')
    L = a.label('ew')
    a(f'{L}:')
    a(f'ds_read_b32 v3, v9 offset:{SY_E0}')
    for k in range(4): a(f'ds_read_b128 {vr(ES+4*k,4)}, v5 offset:{1024*k}')
    a('s_waitcnt lgkmcnt(0)')
    a('v_readfirstlane_b32 s48, v3')
    a('s_cmp_eq_u32 s48, 0')
    g.retry(L)
    for r in range(16): a(f'v_add_f32 v{AO+r}, v{AO+r}, v{ES+r}')
    P = 64
    for q in range(8): a(f'v_cvt_pk_bf16_f32 v{P+q}, v{AO+2*q}, v{AO+2*q+1}')
    for pr in range(2):
        b = P + 4*pr
        a(f'v_permlane32_swap_b32 v{b}, v{b+2}')
        a(f'v_permlane32_swap_b32 v{b+1}, v{b+3}')
        a(f'buffer_store_dwordx4 {vr(b,4)}, v10, {srd(R_OUT)}, s50 offen offset:{32*pr}')
    a('s_cmp_lg_u32 s57, 0')
    a('s_cbranch_scc1 L_noep')
    a(f'v_mov_b32 v3, s{S_TAG}')
    a('v_mov_b32 v4, 0')
    a(f's_mov_b32 s57, {FL_W0}')
    a('s_mov_b64 exec, 1')
    a(f'buffer_store_dword v3, v4, {srd(R_WS)}, s57 offen sc1')
    a('s_mov_b64 exec, -1')
    a('L_noep:')
    g.stamp(20)
    g.stamp_fin()
    a('L_end:')
    a('s_endpgm')
    a('L_fallback:')
    a('s_cmp_lg_u32 s49, 0')
    a('s_cbranch_scc1 L_bok')
    a('s_mov_b32 s49, 1')
    first = [True, True]
    for i, (u, b, mt) in enumerate(items):
        if mt:
            for x in init_mask(S0, 11, mt == 'd'): a(x)
            a(qk(u, b, S0, vr(S0, 16)))
        else: a(qk(u, b, S0, '0'))
        for x in rowmax(6+u, S0, first[u]): a(x)
        first[u] = False
        if i == 2 or (u == 1 and b in (6, 4, 2)):
            a(f's_cmp_eq_u32 s{S_RB}, {(8-b)//2}')
            a('s_cbranch_scc1 L_fb2')
    a('L_fb2:')
    for u in range(2):
        for x in xhalf_neg(6+u, u): a(x)
    a('s_nop 1')
    a('s_branch L_redo')
    a('L_codeend:')
    a.raw('.fill 64, 4, 0xbf800000')
    body = a.finish()
    hdr = f'; persistent fused kernel, generated by gen2.py (own generator)\n; @launch kernel={kn} grid=(256,1,1) block=(512,1,1) lds={LDS_BYTES}\n'
    desc = f'''.section .rodata,"a"
.p2align 6
.amdhsa_kernel {kn}
  .amdhsa_next_free_vgpr 256
  .amdhsa_next_free_sgpr 100
  .amdhsa_accum_offset 256
  .amdhsa_group_segment_fixed_size 0
  .amdhsa_kernarg_size 88
  .amdhsa_user_sgpr_count 2
  .amdhsa_user_sgpr_kernarg_segment_ptr 1
  .amdhsa_system_sgpr_workgroup_id_x 1
  .amdhsa_float_denorm_mode_32 3
.end_amdhsa_kernel
'''
    return hdr + '.amdgcn_target "amdgcn-amd-amdhsa--gfx950"\n' + body + desc

if __name__ == '__main__':
    out = f'cdna_kernels/{NAME}.s'
    for arg in sys.argv[1:]:
        if '=' in arg:
            k, v = arg.split('=')
            OPT[k] = (v if not v.lstrip('-').isdigit() else int(v))
        else: out = arg
    txt = gen()
    import subprocess, re, tempfile
    with tempfile.TemporaryDirectory() as td:
        open(td + '/t.s', 'w').write(txt.replace('CODE_BYTES', '0x12345'))
        subprocess.check_call(['clang', '-x', 'assembler', '-target', 'amdgcn-amd-amdhsa', '-mcpu=gfx950', '-c', td + '/t.s', '-o', td + '/t.o'])
        o = subprocess.check_output(['llvm-objdump', '-h', td + '/t.o']).decode()
        n = int(re.search(r'\.text\s+([0-9a-f]+)', o).group(1), 16)
    print('code bytes', n)
    open(out, 'w').write(txt.replace('CODE_BYTES', hex(n - 3)))
```
